```python
import torch

def _softmax(x, axis=-1):
    return torch.softmax(x, dim=axis)
def _gelu(x):
    return torch.nn.functional.gelu(x, approximate="tanh")
def _silu(x):
    return torch.nn.functional.silu(x)
def _sigmoid(x):
    return torch.sigmoid(x)
def _layernorm(x, axis=-1, eps=1e-5):
    m = x.mean(dim=axis, keepdim=True)
    v = x.var(dim=axis, keepdim=True, unbiased=False)
    return (x - m) / torch.sqrt(v + eps)
def _scatter_add(tgt, idx, src, axis=0):
    return tgt.clone().index_add_(axis, idx, src)
def _segment_sum(src, seg, n):
    out = torch.zeros((n,) + src.shape[1:], dtype=src.dtype)
    return out.index_add_(0, seg, src)
def _pad(x, pw):
    flat = tuple(v for pair in reversed(pw) for v in pair)
    return torch.nn.functional.pad(x, flat)

kernel_name = 'gated_mix__softmax_full_mha__dense_activation_mish__prompt'

def setup_inputs():

    _w = (lambda a: (lambda t: t.to(torch.bfloat16) if t.is_floating_point() else t)(torch.as_tensor(a)))
    def _A_setup():
        B, S, D = 1, 2048, 512
        return {
            "x": _w((lambda *s: torch.randn(*s, dtype=torch.bfloat16) * 0.05)(B, S, D)),
            "wqkv": _w((lambda *s: torch.randn(*s, dtype=torch.bfloat16) * 0.8)(D, 3 * D)),
            "wo": _w((lambda *s: torch.randn(*s, dtype=torch.bfloat16) * 0.05)(D, D)),
        }
    _A_in = _A_setup()

    def _B_setup():
        B, S, D, F = 1, 2048, 512, 1792
        return {
            "x": _w((lambda *s: torch.randn(*s, dtype=torch.bfloat16) * 0.05)(B, S, D)),
            "w1": _w((lambda *s: torch.randn(*s, dtype=torch.bfloat16) * 12.8)(D, F) * (D ** -0.5)),
            "b1": _w((lambda *s: torch.randn(*s, dtype=torch.bfloat16) * 0.2)(F)),
            "w2": _w((lambda *s: torch.randn(*s, dtype=torch.bfloat16) * 0.1)(F, D) * (F ** -0.5)),
        }
    _B_in = _B_setup()

    return {
        "A_x": _A_in["x"],
        "A_wqkv": _A_in["wqkv"],
        "A_wo": _A_in["wo"],
        "B_x": _B_in["x"],
        "B_w1": _B_in["w1"],
        "B_b1": _B_in["b1"],
        "B_w2": _B_in["w2"],
        "gate_w": _w((lambda *s: torch.randn(*s, dtype=torch.bfloat16) * 0.05)(512) * 16.0),
    }

def reference(A_x, A_wqkv, A_wo, B_x, B_w1, B_b1, B_w2, gate_w):
    def _A_ref(x, wqkv, wo):
        B, S, D = x.shape
        H = 32; Dh = D // H
        qkv = (lambda x, *d: x.permute(*d))((x @ wqkv).reshape(B, S, 3, H, Dh), 2, 0, 3, 1, 4)
        q, k, v = qkv[0], qkv[1], qkv[2]
        scale = Dh ** -0.5
        scores = torch.einsum("bhqd,bhkd->bhqk", q, k) * scale
        p = _softmax(scores, axis=-1)
        o = torch.einsum("bhqk,bhkd->bhqd", p, v)
        return (lambda x, *d: x.permute(*d))(o, 0, 2, 1, 3).reshape(B, S, D) @ wo

    def _B_ref(x, w1, b1, w2):
        h = torch.einsum("bsd,df->bsf", x, w1) + b1
        sp = torch.log1p(torch.exp(-torch.abs(h))) + torch.where(h > 0, h, torch.zeros_like(h))
        act = h * torch.tanh(sp)
        return torch.einsum("bsf,fd->bsd", act, w2)

    x = A_x
    g = _sigmoid((x * gate_w).sum(-1, keepdims=True))
    a = _A_ref(x, A_wqkv, A_wo)
    b = _B_ref(x, B_w1, B_b1, B_w2)
    return g * a + (1 - g) * b
```

```python
import math, struct, sys

NAME = "gated_mix__softmax_full_mha__dense_activation_mish__prompt"

QF = 0
KF = 2 << 20
VF = 4 << 20
HF = 6 << 20
GB = 14 << 20
OF = 16 << 20
BP = 18 << 20
WS_SIZE = 24 << 20


def f32bits(x):
    return struct.unpack("<I", struct.pack("<f", x))[0]


LOG2E = 1.4426950408889634
QSCALE = 0.25 * LOG2E


class A:
    def __init__(self):
        self.L = []

    def __call__(self, s):
        for ln in s.strip("\n").split("\n"):
            self.L.append("    " + ln.strip())

    def label(self, l):
        self.L.append(l + ":")

    def raw(self, s):
        self.L.append(s)

    def srd(self, d, base, size):
        self(f"s_mov_b32 s{d}, s{base}")
        self(f"s_and_b32 s{d+1}, s{base+1}, 0xffff")
        self(f"s_mov_b32 s{d+2}, {size:#x}")
        self(f"s_mov_b32 s{d+3}, 0x00020000")

    def nop(self, n):
        while n > 0:
            k = min(n, 16)
            self(f"s_nop {k-1}")
            n -= k


def vr(b, n):
    return f"v[{b}:{b+n-1}]"


def sr(b, n):
    return f"s[{b}:{b+n-1}]"


def mfma(a, d, A_, B_, c=None):
    cs = vr(d, 16) if c is None else (c if isinstance(c, str) else vr(c, 16))
    a(f"v_mfma_f32_32x32x16_bf16 {vr(d,16)}, {vr(A_,4)}, {vr(B_,4)}, {cs}")


def kernel_header(a, name):
    a.raw(f".globl {name}")
    a.raw(".p2align 8")
    a.raw(f".type {name},@function")
    a.label(name)


def kernel_desc(name, vgpr, sgpr):
    acc = (vgpr + 3) // 4 * 4
    return f""".amdhsa_kernel {name}
  .amdhsa_next_free_vgpr {vgpr}
  .amdhsa_next_free_sgpr {sgpr}
  .amdhsa_accum_offset {acc}
  .amdhsa_group_segment_fixed_size 0
  .amdhsa_kernarg_size 88
  .amdhsa_user_sgpr_count 2
  .amdhsa_user_sgpr_kernarg_segment_ptr 1
  .amdhsa_system_sgpr_workgroup_id_x 1
.end_amdhsa_kernel
"""


K1_STAGE = 45056
K1_X, K1_G0, K1_G1, K1_G2, K1_H = 0, 16384, 24576, 32768, 40960
K1_LDS = 3 * K1_STAGE


def emit_mish_tile(a, acc, tmp, sL, sTwo, sClamp):
    T = tmp
    U = tmp + 8
    P = tmp + 16
    for half in range(2):
        b = acc + 8 * half
        for p in range(4):
            a(f"v_pk_mul_f32 {vr(T+2*p,2)}, {vr(b+2*p,2)}, {sr(sL,2)}")
        for i in range(8):
            a(f"v_min_f32 v{T+i}, s{sClamp}, v{T+i}")
        for i in range(8):
            a(f"v_exp_f32 v{T+i}, v{T+i}")
        for p in range(4):
            a(f"v_pk_add_f32 {vr(U+2*p,2)}, {vr(T+2*p,2)}, {sr(sTwo,2)}")
        for p in range(4):
            a(f"v_pk_mul_f32 {vr(T+2*p,2)}, {vr(T+2*p,2)}, {vr(U+2*p,2)}")
        for p in range(4):
            a(f"v_pk_add_f32 {vr(U+2*p,2)}, {vr(T+2*p,2)}, {sr(sTwo,2)}")
        for i in range(8):
            a(f"v_rcp_f32 v{U+i}, v{U+i}")
        for p in range(4):
            a(f"v_pk_mul_f32 {vr(T+2*p,2)}, {vr(T+2*p,2)}, {vr(U+2*p,2)}")
        for p in range(4):
            a(f"v_pk_mul_f32 {vr(T+2*p,2)}, {vr(T+2*p,2)}, {vr(b+2*p,2)}")
        for p in range(4):
            a(f"v_cvt_pk_bf16_f32 v{P+4*half+p}, v{T+2*p}, v{T+2*p+1}")


def gen_k1(a):
    name = "k1_proj_kernel"
    kernel_header(a, name)
    sX, sWQ, sW1, sWS, sAUX = 4, 8, 12, 16, 20
    sMT, sIDX, sTYPE, sWAVE = 40, 41, 42, 43
    a(f"""
    s_cmp_ge_u32 s2, 256
    s_cbranch_scc1 k1_end
    s_load_dwordx4 s[24:27], s[0:1], 0
    s_load_dwordx4 s[28:31], s[0:1], 32
    s_load_dwordx2 s[32:33], s[0:1], 56
    s_load_dwordx2 s[34:35], s[0:1], 80
    v_lshrrev_b32 v1, 6, v0
    v_and_b32 v0, 63, v0
    s_and_b32 s36, s2, 7
    s_lshr_b32 s37, s2, 3
    v_readfirstlane_b32 s{sWAVE}, v1
    s_and_b32 s38, s36, 1
    s_lshr_b32 s39, s36, 1
    s_and_b32 s{sMT}, s37, 7
    s_lshl3_add_u32 s{sMT}, s38, s{sMT}
    s_lshr_b32 s{sIDX}, s37, 3
    s_lshr_b32 s{sTYPE}, s{sIDX}, 1
    s_and_b32 s{sIDX}, s{sIDX}, 1
    s_lshl1_add_u32 s{sIDX}, s39, s{sIDX}
    """)
    a(f"""
    s_mul_i32 s46, s{sIDX}, 3
    s_add_u32 s46, s46, 32
    s_and_b32 s47, s{sIDX}, 1
    s_add_u32 s44, s46, s47
    s_lshl_b32 s47, s47, 1
    s_sub_u32 s45, s46, s47
    s_add_u32 s45, s45, 2
    s_lshl_b32 s46, s{sIDX}, 2
    s_add_u32 s47, s46, 2
    s_cmp_eq_u32 s{sTYPE}, 0
    s_cselect_b32 s44, s44, s46
    s_cselect_b32 s45, s45, s47
    s_waitcnt lgkmcnt(0)
    """)
    a.srd(sX, 24, 2048 * 1024)
    a.srd(sWQ, 26, 512 * 3072)
    a.srd(sW1, 28, 512 * 3584)
    a.srd(sWS, 34, WS_SIZE)
    a(f"""
    s_cmp_ge_u32 s{sWAVE}, 4
    s_cbranch_scc1 k1_loader
    """)
    a.srd(sAUX, 30, 1792 * 2)
    sTH, sCH = 48, 49
    a(f"""
    s_lshr_b32 s{sTH}, s{sWAVE}, 1
    s_and_b32 s{sCH}, s{sWAVE}, 1
    """)
    vXA = 8
    vWG, vWH = 16, 17
    vL16 = 18
    vVst = 19
    a(f"""
    v_and_b32 v1, 31, v0
    v_lshrrev_b32 v2, 5, v0
    v_bfe_u32 v3, v0, 1, 3
    v_xor_b32 v3, v3, v2
    v_lshlrev_b32 v3, 4, v3
    v_lshl_add_u32 v3, v1, 7, v3
    s_lshl_b32 s50, s{sTH}, 1
    s_add_u32 s51, s50, s{sCH}
    s_xor_b32 s52, s51, 1
    s_lshl_b32 s53, s51, 12
    s_lshl_b32 s54, s52, 12
    v_add_u32 v{vXA}, s53, v3
    v_add_u32 v{vXA+4}, s54, v3
    """)
    for s in range(1, 4):
        a(f"v_xor_b32 v{vXA+s}, {32*s}, v{vXA}")
        a(f"v_xor_b32 v{vXA+4+s}, {32*s}, v{vXA+4}")
    a(f"""
    v_bfe_u32 v4, v0, 2, 2
    v_and_b32 v5, 3, v0
    v_bfe_u32 v6, v0, 4, 1
    v_lshlrev_b32 v4, 6, v4
    v_lshl_add_u32 v4, v5, 3, v4
    v_lshl_add_u32 v4, v6, 5, v4
    v_lshl_add_u32 v{vWH}, v2, 9, v4
    v_lshl_add_u32 v{vWG}, v2, 10, v4
    s_lshl_b32 s55, s{sCH}, 9
    v_add_u32 v{vWG}, s55, v{vWG}
    v_lshlrev_b32 v{vL16}, 4, v0
    v_and_b32 v5, 15, v0
    v_lshlrev_b32 v5, 4, v5
    v_lshl_add_u32 v5, v2, 8, v5
    v_lshl_add_u32 v{vVst}, v6, 16, v5
    v_lshlrev_b32 v7, 3, v2
    """)
    a(f"""
    s_lshl2_add_u32 s51, s{sMT}, s51
    s_lshl2_add_u32 s52, s{sMT}, s52
    s_mov_b32 s56, {f32bits(LOG2E):#x}
    s_mov_b32 s57, {f32bits(LOG2E):#x}
    s_mov_b32 s58, 2.0
    s_mov_b32 s59, 2.0
    s_mov_b32 s60, {f32bits(30.0):#x}
    s_mov_b32 s62, {f32bits(QSCALE):#x}
    s_mov_b32 s63, {f32bits(QSCALE):#x}
    s_cmp_eq_u32 s{sTYPE}, 0
    s_cbranch_scc0 k1_compR
    """)
    ACC = 32
    FR = 144
    TMP = 192

    def load_bias(ct_sreg_expr_setup, dst_tmp):
        for q in range(4):
            a(f"buffer_load_dwordx2 {vr(dst_tmp+2*q,2)}, v7, {sr(sAUX,4)}, s61 offen offset:{16*q}")

    def unpack_bias(src, accs):
        for q in range(4):
            for acc in accs:
                a(f"v_lshlrev_b32 v{acc+4*q}, 16, v{src+2*q}")
                a(f"v_and_b32 v{acc+4*q+1}, 0xffff0000, v{src+2*q}")
                a(f"v_lshlrev_b32 v{acc+4*q+2}, 16, v{src+2*q+1}")
                a(f"v_and_b32 v{acc+4*q+3}, 0xffff0000, v{src+2*q+1}")

    for typ in ("P", "R"):
        if typ == "R":
            a.label("k1_compR")
        if typ == "P":
            wsrc = [("G", K1_G0), ("G", K1_G1), ("G", K1_G2), ("H", K1_H)]
            tiles = [(0, 0, 0, False), (1, 0, 1, False), (2, 1, 0, False), (3, 1, 1, False),
                     (4, 2, 0, False), (5, 2, 1, False), (6, 3, 0, False)]
        else:
            wsrc = [("G", K1_G0), ("G", K1_G1), ("G", K1_G2)]
            tiles = [(0, 0, 0, True), (1, 0, 1, True), (2, 1, 0, False), (3, 1, 1, False),
                     (4, 2, 0, False), (5, 2, 1, False)]
        acc = lambda t: ACC + 16 * t
        if typ == "P":
            a(f"s_add_u32 s64, s44, s{sCH}")
            a(f"s_mov_b32 s65, s45")
            a(f"s_lshl_b32 s61, s64, 6")
            load_bias(None, TMP)
            a(f"s_lshl_b32 s61, s65, 6")
            load_bias(None, TMP + 8)
            for t in range(4):
                for r in range(16):
                    a(f"v_mov_b32 v{acc(t)+r}, 0")
            a("s_waitcnt vmcnt(0)")
            unpack_bias(TMP, [acc(4), acc(5)])
            unpack_bias(TMP + 8, [acc(6)])
        else:
            a(f"s_add_u32 s64, s44, s{sCH}")
            a(f"s_add_u32 s65, s45, s{sCH}")
            a(f"s_lshl_b32 s61, s64, 6")
            load_bias(None, TMP)
            a(f"s_lshl_b32 s61, s65, 6")
            load_bias(None, TMP + 8)
            for t in range(2):
                for r in range(16):
                    a(f"v_mov_b32 v{acc(t)+r}, 0")
            a("s_waitcnt vmcnt(0)")
            unpack_bias(TMP, [acc(2), acc(3)])
            unpack_bias(TMP + 8, [acc(4), acc(5)])

        def reads(s, fs):
            base = FR + 24 * fs
            out = []
            out.append(f"ds_read_b128 {vr(base,4)}, v{vXA+s} offset:{K1_X}")
            for wi, (kind, off) in enumerate(wsrc):
                for e in range(2):
                    d = base + 8 + 4 * wi + 2 * e
                    if kind == "G":
                        out.append(f"ds_read_b64_tr_b16 {vr(d,2)}, v{vWG} offset:{off + s*2048 + e*256}")
                    else:
                        out.append(f"ds_read_b64_tr_b16 {vr(d,2)}, v{vWH} offset:{off + s*1024 + e*256}")
                if wi == 0:
                    out.append(f"ds_read_b128 {vr(base+4,4)}, v{vXA+4+s} offset:{K1_X}")
            return out

        def step(fs, rd):
            base = FR + 24 * fs
            rd = list(rd)
            for ti, (t, wi, xi, sw) in enumerate(tiles):
                W = base + 8 + 4 * wi
                X = base + 4 * xi
                if sw:
                    mfma(a, acc(t), X, W)
                else:
                    mfma(a, acc(t), W, X)
                for _ in range(2):
                    if rd:
                        a(rd.pop(0))
            assert not rd

        a("s_mov_b32 s66, 0")
        a("s_mov_b32 s67, 0")
        a(f"s_mov_b32 s72, {K1_STAGE}")
        a("s_barrier")
        for r in reads(0, 0):
            a(r)
        a.label(f"k1_loop{typ}")
        for s in range(3):
            a("s_waitcnt lgkmcnt(0)")
            step(s & 1, reads(s + 1, (s + 1) & 1))
        a(f"""
        s_add_u32 s66, s66, 1
        s_cmp_eq_u32 s66, 3
        s_cselect_b32 s68, {(-2*K1_STAGE) & 0xffffffff:#x}, s72
        s_cselect_b32 s66, 0, s66
        s_waitcnt lgkmcnt(0)
        s_barrier
        """)
        for i in range(10):
            a(f"v_add_u32 v{vXA+i}, s68, v{vXA+i}")
        step(1, reads(0, 0))
        a(f"""
        s_add_u32 s67, s67, 1
        s_cmp_lt_u32 s67, 8
        s_cbranch_scc1 k1_loop{typ}
        s_waitcnt lgkmcnt(0)
        """)
        a.nop(16)
        P = TMP + 16
        if typ == "P":
            a(f"s_lshl1_add_u32 s69, s{sIDX}, s{sCH}")
            a(f"s_lshl_b32 s69, s69, 17")
            for t in range(4):
                isq = t < 2
                tok = 51 if (t & 1) == 0 else 52
                b = acc(t)
                if isq:
                    for p in range(8):
                        a(f"v_pk_mul_f32 {vr(b+2*p,2)}, {vr(b+2*p,2)}, {sr(62,2)}")
                for p in range(8):
                    a(f"v_cvt_pk_bf16_f32 v{b+p}, v{b+2*p}, v{b+2*p+1}")
                a(f"s_lshl_b32 s70, s{tok}, 10")
                a(f"s_add_u32 s70, s70, s69")
                a(f"s_add_u32 s70, s70, {QF if isq else KF:#x}")
                a(f"s_add_u32 s71, s70, 0x10000")
                a(f"buffer_store_dwordx4 {vr(b,4)}, v{vL16}, {sr(sWS,4)}, s70 offen")
                a(f"buffer_store_dwordx4 {vr(b+4,4)}, v{vL16}, {sr(sWS,4)}, s71 offen")
            ftiles = [(4, 51, 64), (5, 52, 64), (6, 51, 65)]
        else:
            a(f"s_lshl1_add_u32 s69, s{sIDX}, s{sCH}")
            a(f"s_lshl_b32 s69, s69, 17")
            for t in range(2):
                tok = 51 if t == 0 else 52
                b = acc(t)
                for p in range(8):
                    a(f"v_cvt_pk_bf16_f32 v{b+p}, v{b+2*p}, v{b+2*p+1}")
                a(f"s_lshl_b32 s70, s{tok}, 10")
                a(f"s_add_u32 s70, s70, s69")
                a(f"s_add_u32 s70, s70, {VF:#x}")
                a(f"buffer_store_dwordx4 {vr(b,4)}, v{vVst}, {sr(sWS,4)}, s70 offen")
                a(f"buffer_store_dwordx4 {vr(b+4,4)}, v{vVst}, {sr(sWS,4)}, s70 offen offset:512")
            ftiles = [(2, 51, 64), (3, 52, 64), (4, 51, 65), (5, 52, 65)]
        for fi, (t, tok, ct) in enumerate(ftiles):
            tmp = TMP if fi % 2 == 0 else FR
            emit_mish_tile(a, acc(t), tmp, 56, 58, 60)
            a(f"s_mul_i32 s70, s{tok}, 112")
            a(f"s_lshl1_add_u32 s70, s{ct}, s70")
            a(f"s_lshl_b32 s70, s70, 10")
            a(f"s_add_u32 s70, s70, {HF:#x}")
            a(f"buffer_store_dwordx4 {vr(tmp+16,4)}, v{vL16}, {sr(sWS,4)}, s70 offen")
            a(f"buffer_store_dwordx4 {vr(tmp+20,4)}, v{vL16}, {sr(sWS,4)}, s70 offen offset:1024")
        a("s_endpgm")

    a.label("k1_loader")
    a.srd(sAUX, 32, 512 * 2)
    sLW = 48
    vXe, vXo, vWq, vWf, vH = 8, 9, 10, 11, 12
    a(f"""
    s_sub_u32 s{sLW}, s{sWAVE}, 4
    v_lshrrev_b32 v1, 3, v0
    v_and_b32 v2, 7, v0
    v_lshrrev_b32 v3, 4, v0
    v_xor_b32 v2, v2, v3
    v_lshlrev_b32 v2, 4, v2
    v_lshl_add_u32 v{vXe}, v1, 10, v2
    v_xor_b32 v{vXo}, 64, v{vXe}
    v_bfe_u32 v1, v0, 2, 3
    v_lshrrev_b32 v2, 5, v0
    v_and_b32 v3, 3, v0
    v_lshlrev_b32 v3, 4, v3
    v_lshl_add_u32 v2, v2, 6, v3
    s_movk_i32 s50, 3072
    s_movk_i32 s51, 3584
    v_mad_u32_u24 v{vWq}, v1, s50, v2
    v_mad_u32_u24 v{vWf}, v1, s51, v2
    v_lshrrev_b32 v1, 2, v0
    v_mad_u32_u24 v{vH}, v1, s51, v3
    """)
    a(f"""
    s_lshl_b32 s52, s{sMT}, 17
    s_lshl_b32 s57, s{sLW}, 15
    s_add_u32 s52, s52, s57
    s_mul_i32 s58, s{sLW}, {16*3072}
    s_mul_i32 s59, s{sLW}, {16*3584}
    s_lshl_b32 s60, s{sIDX}, 7
    s_add_u32 s53, s58, s60
    s_lshl_b32 s61, s44, 6
    s_lshl_b32 s62, s45, 6
    s_lshl_b32 s63, s{sLW}, 12
    s_lshl_b32 s64, s{sLW}, 11
    s_lshl_b32 s65, s{sLW}, 10
    s_cmp_eq_u32 s{sTYPE}, 0
    s_cbranch_scc0 k1_loadR
    """)
    for typ in ("P", "R"):
        if typ == "R":
            a.label("k1_loadR")
        if typ == "P":
            a(f"""
            s_add_u32 s54, s53, 1024
            s_add_u32 s55, s59, s61
            s_add_u32 s56, s59, s62
            """)
            groups = [(53, vWq, sWQ, 3072, K1_G0), (54, vWq, sWQ, 3072, K1_G1), (55, vWf, sW1, 3584, K1_G2)]
        else:
            a(f"""
            s_add_u32 s53, s53, 2048
            s_add_u32 s54, s59, s61
            s_add_u32 s55, s59, s62
            """)
            groups = [(53, vWq, sWQ, 3072, K1_G0), (54, vWf, sW1, 3584, K1_G1), (55, vWf, sW1, 3584, K1_G2)]
        n = 11 if typ == "P" else 10

        def issue(c):
            st = (c % 3) * K1_STAGE
            for i in range(4):
                a(f"s_add_u32 m0, s63, {st + K1_X + i*1024}")
                a(f"s_add_u32 s66, s52, {i*8192 + c*128}")
                a(f"buffer_load_dwordx4 v{vXe if i % 2 == 0 else vXo}, {sr(sX,4)}, s66 offen lds")
            for (sg, vw, srd, pitch, goff) in groups:
                for bb in range(2):
                    a(f"s_add_u32 m0, s64, {st + goff + bb*1024}")
                    a(f"s_add_u32 s66, s{sg}, {(64*c + 8*bb)*pitch}")
                    a(f"buffer_load_dwordx4 v{vw}, {sr(srd,4)}, s66 offen lds")
            if typ == "P":
                a(f"s_add_u32 m0, s65, {st + K1_H}")
                a(f"s_add_u32 s66, s56, {64*c*3584}")
                a(f"buffer_load_dwordx4 v{vH}, {sr(sW1,4)}, s66 offen lds")

        issue(0); issue(1); issue(2)
        for c in range(8):
            allowed = 2 * n if c == 0 else (n if c < 7 else 0)
            a(f"s_waitcnt vmcnt({allowed})")
            a("s_barrier")
            if 1 <= c and c + 2 <= 7:
                issue(c + 2)
        if typ == "P":
            a("s_branch k1_gate")
    a.label("k1_gate")
    a(f"""
    s_cmp_lg_u32 s{sLW}, 0
    s_cbranch_scc1 k1_lastbar
    s_lshl3_add_u32 s66, s{sTYPE}, s{sIDX}
    s_lshl4_add_u32 s66, s{sMT}, s66
    s_lshl_b32 s67, s66, 13
    v_lshrrev_b32 v1, 3, v0
    v_and_b32 v2, 7, v0
    v_lshlrev_b32 v2, 4, v2
    v_lshl_add_u32 v3, v1, 10, v2
    """)
    for i in range(8):
        a(f"buffer_load_dwordx4 {vr(16+4*i,4)}, v3, {sr(sX,4)}, s67 offen offset:{128*i}")
        a(f"buffer_load_dwordx4 {vr(48+4*i,4)}, v2, {sr(sAUX,4)}, 0 offen offset:{128*i}")
    a("v_mov_b32 v4, 0")
    a("v_mov_b32 v5, 0")
    a("s_waitcnt vmcnt(0)")
    for i in range(32):
        a(f"v_dot2_f32_bf16 v{4 + (i&1)}, v{16+i}, v{48+i}, v{4 + (i&1)}")
    a.nop(4)
    a(f"""
    v_add_f32 v4, v4, v5
    s_nop 1
    v_add_f32_dpp v4, v4, v4 quad_perm:[1,0,3,2] row_mask:0xf bank_mask:0xf
    s_nop 1
    v_add_f32_dpp v4, v4, v4 quad_perm:[2,3,0,1] row_mask:0xf bank_mask:0xf
    s_nop 1
    v_add_f32_dpp v4, v4, v4 row_half_mirror row_mask:0xf bank_mask:0xf
    v_mul_f32 v4, {f32bits(-LOG2E):#x}, v4
    v_exp_f32 v4, v4
    s_nop 0
    v_add_f32 v4, 1.0, v4
    v_rcp_f32 v4, v4
    v_lshlrev_b32 v1, 2, v1
    s_lshl_b32 s67, s66, 5
    s_add_u32 s67, s67, {GB:#x}
    buffer_store_dword v4, v1, {sr(sWS,4)}, s67 offen
    """)
    a.label("k1_lastbar")
    a("s_barrier")
    a.label("k1_end")
    a("s_endpgm")
    return kernel_desc(name, 216, 80)


K2_K, K2_V, K2_RING, K2_RED = 0, 65536, 131072, 147456
K2_LDS = 163840
K2_CNT = K2_RING


def gen_k2(a):
    name = "k2_attn_kernel"
    kernel_header(a, name)
    sWS, sW2 = 4, 8
    sWAVE, sHEAD, sQB = 20, 21, 22
    a(f"""
    s_cmp_ge_u32 s2, 256
    s_cbranch_scc1 k2_end
    s_load_dwordx2 s[12:13], s[0:1], 48
    s_load_dwordx2 s[14:15], s[0:1], 80
    v_lshrrev_b32 v1, 6, v0
    v_and_b32 v0, 63, v0
    s_and_b32 s16, s2, 7
    s_lshr_b32 s17, s2, 3
    v_readfirstlane_b32 s{sWAVE}, v1
    s_and_b32 s18, s17, 3
    s_lshl2_add_u32 s{sHEAD}, s16, s18
    s_lshr_b32 s{sQB}, s17, 2
    v_lshlrev_b32 v1, 4, v0
    s_waitcnt lgkmcnt(0)
    """)
    a.srd(sWS, 14, WS_SIZE)
    a.srd(sW2, 12, 1792 * 1024)
    a(f"""
    s_cmp_ge_u32 s{sWAVE}, 8
    s_cbranch_scc1 k2_gemm
    """)
    vL16 = 1
    vKA, vVA = 2, 3
    vG = 4
    Q = 8
    KFR = 12
    VFR = 16
    P0, P1 = 24, 28
    CM = 32
    SA, SB = 48, 64
    O = 80
    sMASK = 24
    sRETRY = 26
    sIT = 27
    a(f"""
    s_lshl_b32 s28, s{sHEAD}, 16
    s_lshl_b32 s29, s{sWAVE}, 10
    s_add_u32 s28, s28, s29
    s_lshl3_add_u32 s30, s{sQB}, s{sWAVE}
    s_lshl_b32 s31, s30, 10
    s_lshl_b32 s32, s{sHEAD}, 16
    s_add_u32 s31, s31, s32
    """)
    def dma(j):
        a(f"s_add_u32 m0, s29, {K2_K + j*8192}")
        a(f"s_add_u32 s33, s28, {KF + j*8192:#x}")
        a(f"buffer_load_dwordx4 v{vL16}, {sr(sWS,4)}, s33 offen lds")
        a(f"s_add_u32 m0, s29, {K2_V + j*8192}")
        a(f"s_add_u32 s33, s28, {VF + j*8192:#x}")
        a(f"buffer_load_dwordx4 v{vL16}, {sr(sWS,4)}, s33 offen lds")
    a(f"buffer_load_dwordx4 {vr(Q,4)}, v{vL16}, {sr(sWS,4)}, s31 offen")
    dma(0)
    a(f"""
    v_and_b32 v5, 31, v0
    v_lshlrev_b32 v5, 2, v5
    s_lshl_b32 s33, s30, 7
    s_add_u32 s33, s33, {GB:#x}
    buffer_load_dword v{vG}, v5, {sr(sWS,4)}, s33 offen
    """)
    for j in range(1, 8):
        dma(j)
    a(f"""
    v_and_b32 v5, 15, v0
    v_lshrrev_b32 v6, 5, v0
    v_lshlrev_b32 v5, 4, v5
    v_lshl_add_u32 v5, v6, 8, v5
    v_add_u32 v7, {K2_V}, v5
    s_mov_b32 s{sMASK}, 0x0000ffff
    s_mov_b32 s{sMASK+1}, 0x0000ffff
    s_mov_b32 s{sRETRY}, 0
    """)
    for r in range(8):
        a(f"v_mov_b32 v{VFR+r}, 0x3f803f80")
    a("s_waitcnt vmcnt(15)")
    a("s_barrier")
    a(f"ds_read_b128 {vr(KFR,4)}, v{vL16} offset:{K2_K}")
    a("s_waitcnt lgkmcnt(0)")
    mfma(a, SA, KFR, Q, "0")
    a.nop(16)

    def reduce_max(src, dst):
        a(f"v_max3_f32 v{dst}, v{src}, v{src+1}, v{src+2}")
        for i in range(3, 15, 2):
            a(f"v_max3_f32 v{dst}, v{dst}, v{src+i}, v{src+i+1}")
        a(f"v_max_f32 v{dst}, v{dst}, v{src+15}")
    reduce_max(SA, 5)
    a.label("k2_setmax")
    a(f"""
    v_mov_b32 v6, v5
    s_nop 1
    v_permlane32_swap_b32 v5, v6
    s_nop 1
    v_max_f32 v5, v5, v6
    v_sub_f32 v5, 0, v5
    """)
    for r in range(16):
        a(f"v_mov_b32 v{CM+r}, v5")
    for r in range(16):
        a(f"v_mov_b32 v{O+r}, 0")
    a(f"""
    v_mov_b32 v{vKA}, v{vL16}
    v_mov_b32 v{vVA}, v7
    ds_read_b128 {vr(KFR,4)}, v{vKA} offset:{K2_K}
    """)
    for r in range(4):
        a(f"v_mov_b32 v{P1+r}, 0")
    a("s_waitcnt lgkmcnt(0)")
    mfma(a, SA, KFR, Q, CM)
    a(f"ds_read_b128 {vr(KFR,4)}, v{vKA} offset:{K2_K+1024}")
    a(f"s_mov_b32 s{sIT}, 0")
    a("s_setprio 2")
    a.nop(12)
    a.label("k2_loop")
    U = 8
    for u in range(U):
        S = SA if u % 2 == 0 else SB
        Sn = SB if u % 2 == 0 else SA
        ex = lambda i: a(f"v_exp_f32 v{S+i}, v{S+i}")
        cv = lambda p: a(f"v_cvt_pk_bf16_f32 v{P0+p}, v{S+2*p}, v{S+2*p+1}")
        ex(0); ex(1)
        mfma(a, O, VFR + 4, P1)
        a(f"s_mov_b64 exec, {sr(sMASK,2)}")
        a(f"ds_read_b128 {vr(VFR,4)}, v{vVA} offset:{u*1024}")
        a(f"ds_read_b128 {vr(VFR+4,4)}, v{vVA} offset:{u*1024+512}")
        a("s_mov_b64 exec, -1")
        ex(2); ex(3); ex(4); ex(5); ex(6); ex(7)
        if u == U - 2:
            a(f"s_cmp_eq_u32 s{sIT}, 0")
            a(f"s_cbranch_scc0 k2_nobar")
            a(f"s_cmp_eq_u32 s{sRETRY}, 0")
            a(f"s_cbranch_scc0 k2_nobar")
            a("s_waitcnt vmcnt(0)")
            a("s_barrier")
            a.label("k2_nobar")
        a("s_waitcnt lgkmcnt(2)")
        mfma(a, Sn, KFR, Q, CM)
        a(f"ds_read_b128 {vr(KFR,4)}, v{vKA} offset:{K2_K + (u+2)*1024}")
        cv(0); cv(1); cv(2)
        ex(8)
        cv(3)
        ex(9); ex(10); ex(11)
        a("s_waitcnt lgkmcnt(1)")
        mfma(a, O, VFR, P0)
        ex(12); ex(13); ex(14); ex(15)
        cv(4); cv(5); cv(6); cv(7)
    a(f"""
    v_add_u32 v{vKA}, {U*1024}, v{vKA}
    v_add_u32 v{vVA}, {U*1024}, v{vVA}
    s_add_u32 s{sIT}, s{sIT}, 1
    s_cmp_eq_u32 s{sIT}, 4
    s_cbranch_scc0 k2_np1
    s_setprio 1
    """)
    a.label("k2_np1")
    a(f"""
    s_cmp_eq_u32 s{sIT}, 7
    s_cbranch_scc0 k2_np2
    s_setprio 0
    s_cmp_eq_u32 s{sRETRY}, 0
    s_cbranch_scc0 k2_np2
    s_barrier
    """)
    a.label("k2_np2")
    a(f"""
    s_cmp_lt_u32 s{sIT}, 8
    s_cbranch_scc1 k2_loop
    """)
    mfma(a, O, VFR + 4, P1)
    a("s_waitcnt lgkmcnt(0)")
    a.nop(16)
    a(f"""
    v_max3_f32 v5, abs(v{O}), abs(v{O+1}), abs(v{O+2})
    v_max3_f32 v5, v5, abs(v{O+3}), abs(v{O+4})
    v_max3_f32 v5, v5, abs(v{O+5}), abs(v{O+6})
    v_max_f32 v5, v5, abs(v{O+7})
    v_add_f32 v6, v{O}, v{O+1}
    v_add_f32 v6, v6, v{O+2}
    v_add_f32 v6, v6, v{O+3}
    v_add_f32 v6, v6, v{O+4}
    v_add_f32 v6, v6, v{O+5}
    v_add_f32 v6, v6, v{O+6}
    v_add_f32 v6, v6, v{O+7}
    s_mov_b32 s34, {f32bits(2.0**64):#x}
    s_mov_b32 s35, {f32bits(2.0**120):#x}
    v_cmp_nlt_f32 vcc, v{O+8}, s34
    v_cmp_nlt_f32 s[36:37], v5, s35
    v_cmp_u_f32 s[38:39], v6, v6
    s_or_b64 vcc, vcc, s[36:37]
    s_or_b64 vcc, vcc, s[38:39]
    s_cmp_eq_u64 vcc, 0
    s_cbranch_scc1 k2_fin
    s_cmp_eq_u32 s{sRETRY}, 0
    s_cbranch_scc0 k2_fin
    """)
    a(f"""
    s_mov_b32 s{sRETRY}, 1
    s_mov_b32 s{sIT}, 0
    v_mov_b32 v{vKA}, v{vL16}
    v_mov_b32 v5, 0xff800000
    """)
    a.label("k2_maxloop")
    a(f"ds_read_b128 {vr(KFR,4)}, v{vKA} offset:{K2_K}")
    a("s_waitcnt lgkmcnt(0)")
    mfma(a, SA, KFR, Q, "0")
    a(f"v_add_u32 v{vKA}, 1024, v{vKA}")
    a.nop(16)
    for i in range(0, 16, 2):
        a(f"v_max3_f32 v5, v5, v{SA+i}, v{SA+i+1}")
    a(f"""
    s_add_u32 s{sIT}, s{sIT}, 1
    s_cmp_lt_u32 s{sIT}, 64
    s_cbranch_scc1 k2_maxloop
    s_branch k2_setmax
    """)
    a.label("k2_fin")
    a(f"""
    v_rcp_f32 v5, v{O+8}
    s_lshl_b32 s33, s30, 15
    s_lshl_b32 s34, s{sHEAD}, 10
    v_mul_f32 v5, v5, v{vG}
    s_add_u32 s33, s33, s34
    s_add_u32 s33, s33, {OF:#x}
    """)
    for r in range(8):
        a(f"v_mul_f32 v{O+r}, v{O+r}, v5")
    for p in range(4):
        a(f"v_cvt_pk_bf16_f32 v{O+p}, v{O+2*p}, v{O+2*p+1}")
    a(f"buffer_store_dwordx4 {vr(O,4)}, v{vL16}, {sr(sWS,4)}, s33 offen")
    a("s_endpgm")

    a.label("k2_gemm")
    sGW, sTB, sCB = 24, 25, 26
    ACC = 32
    HB = 96
    WB = 120
    vD, vT, vG2 = 2, 3, 4
    NST = 28
    a(f"""
    s_setprio 3
    s_sub_u32 s{sGW}, s{sWAVE}, 8
    s_lshr_b32 s27, s17, 3
    s_lshl2_add_u32 s{sTB}, s16, s27
    s_and_b32 s{sCB}, s17, 7
    v_bfe_u32 v5, v0, 2, 3
    v_lshrrev_b32 v6, 5, v0
    v_and_b32 v7, 3, v0
    v_lshlrev_b32 v8, 4, v7
    v_lshl_add_u32 v8, v6, 6, v8
    v_lshl_add_u32 v{vD}, v5, 10, v8
    v_bfe_u32 v5, v0, 2, 2
    v_lshl_add_u32 v5, v6, 2, v5
    v_lshlrev_b32 v5, 6, v5
    v_lshl_add_u32 v5, v7, 3, v5
    v_bfe_u32 v8, v0, 4, 1
    v_lshl_add_u32 v5, v8, 5, v5
    s_lshl_b32 s28, s{sGW}, 12
    s_add_u32 s28, s28, {K2_RING}
    v_add_u32 v{vT}, s28, v5
    s_mul_i32 s29, s{sGW}, {448*1024}
    s_lshl_b32 s30, s{sCB}, 7
    s_add_u32 s29, s29, s30
    s_mul_i32 s31, s{sTB}, {2*112}
    s_mul_i32 s32, s{sGW}, {NST}
    s_add_u32 s31, s31, s32
    s_lshl_b32 s31, s31, 10
    s_add_u32 s31, s31, {HF:#x}
    s_add_u32 s32, s31, {112*1024}
    """)

    def issue(k):
        slot = k % 2
        hs = k % 3
        for e in range(2):
            a(f"s_add_u32 m0, s28, {slot*2048 + e*1024}")
            a(f"s_add_u32 s33, s29, {(16*k + 8*e)*1024}")
            a(f"buffer_load_dwordx4 v{vD}, {sr(sW2,4)}, s33 offen lds")
        a(f"s_add_u32 s33, s31, {k*1024}")
        a(f"buffer_load_dwordx4 {vr(HB+8*hs,4)}, v1, {sr(sWS,4)}, s33 offen")
        a(f"s_add_u32 s33, s32, {k*1024}")
        a(f"buffer_load_dwordx4 {vr(HB+8*hs+4,4)}, v1, {sr(sWS,4)}, s33 offen")

    issue(0)
    issue(1)
    for r in range(64):
        a(f"v_mov_b32 v{ACC+r}, 0")
    a(f"""
    s_lshl_b32 s33, s{sGW}, 12
    s_add_u32 s33, s33, {K2_RED}
    v_add_u32 v6, s33, v1
    """)
    for i in range(4):
        a(f"ds_write_b128 v6, {vr(ACC,4)} offset:{i*1024}")
    a("s_waitcnt lgkmcnt(0)")
    a("s_barrier")
    for k in range(NST):
        slot = k % 2
        hs = k % 3
        a(f"s_waitcnt vmcnt({4 if k + 1 < NST else 0})")
        for ct in range(2):
            for e in range(2):
                a(f"ds_read_b64_tr_b16 {vr(WB+4*ct+2*e,2)}, v{vT} offset:{slot*2048 + e*1024 + ct*512}")
        a("s_waitcnt lgkmcnt(0)")
        if k + 2 < NST:
            issue(k + 2)
        for ct in range(2):
            for tt in range(2):
                mfma(a, ACC + 32*ct + 16*tt, WB + 4*ct, HB + 8*hs + 4*tt)
        if k == 1:
            a("s_barrier")
    a(f"""
    v_and_b32 v6, 31, v0
    v_lshlrev_b32 v6, 2, v6
    s_and_b32 s34, s{sGW}, 1
    s_lshl1_add_u32 s33, s{sTB}, s34
    s_lshl_b32 s33, s33, 7
    s_add_u32 s33, s33, {GB:#x}
    buffer_load_dword v4, v6, {sr(sWS,4)}, s33 offen
    v_lshlrev_b32 v6, 2, v0
    v_add_u32 v6, {K2_RED}, v6
    """)
    a.nop(16)
    for r in range(64):
        a(f"ds_add_f32 v6, v{ACC+r} offset:{r*256}")
    a(f"""
    s_lshl_b32 s33, s{sGW}, 12
    v_add_u32 v6, s33, v6
    s_lshl3_add_u32 s34, s{sTB}, s{sCB}
    s_lshl_b32 s34, s34, 14
    s_add_u32 s34, s34, s33
    s_add_u32 s34, s34, {BP:#x}
    s_waitcnt vmcnt(0) lgkmcnt(0)
    s_barrier
    """)
    for r in range(16):
        a(f"ds_read_b32 v{ACC+r}, v6 offset:{r*256}")
    a("v_sub_f32 v4, 1.0, v4")
    a("s_waitcnt lgkmcnt(0)")
    for r in range(16):
        a(f"v_mul_f32 v{ACC+r}, v{ACC+r}, v4")
    for q in range(4):
        a(f"buffer_store_dwordx4 {vr(ACC+4*q,4)}, v1, {sr(sWS,4)}, s34 offen offset:{q*1024}")
    a.label("k2_end")
    a("s_endpgm")
    return kernel_desc(name, 128, 48)


K3_W, K3_O = 0, 65536
K3_LDS = 131072


def gen_k3(a):
    name = "k3_out_kernel"
    kernel_header(a, name)
    sWS, sWO, sOUT = 4, 8, 12
    sWAVE, sTB, sCB = 24, 25, 26
    a(f"""
    s_cmp_ge_u32 s2, 256
    s_cbranch_scc1 k3_end
    s_load_dwordx2 s[16:17], s[0:1], 16
    s_load_dwordx2 s[18:19], s[0:1], 64
    s_load_dwordx2 s[20:21], s[0:1], 80
    v_lshrrev_b32 v1, 6, v0
    v_and_b32 v0, 63, v0
    s_and_b32 s22, s2, 7
    s_lshr_b32 s23, s2, 3
    v_readfirstlane_b32 s{sWAVE}, v1
    s_lshr_b32 s27, s23, 3
    s_lshl2_add_u32 s{sTB}, s22, s27
    s_and_b32 s{sCB}, s23, 7
    v_lshlrev_b32 v1, 4, v0
    s_waitcnt lgkmcnt(0)
    """)
    a.srd(sWS, 20, WS_SIZE)
    a.srd(sWO, 16, 512 * 1024)
    a.srd(sOUT, 18, 2048 * 1024)
    a(f"""
    s_cmp_ge_u32 s{sWAVE}, 4
    s_cbranch_scc1 k3_loader
    """)
    ACC, FR = 16, 32
    vT, vO = 2, 3
    a(f"""
    s_lshl3_add_u32 s28, s{sTB}, s{sCB}
    s_lshl_b32 s28, s28, 14
    s_lshl_b32 s29, s{sWAVE}, 12
    s_add_u32 s28, s28, s29
    s_add_u32 s28, s28, {BP:#x}
    """)
    for q in range(4):
        a(f"buffer_load_dwordx4 {vr(ACC+4*q,4)}, v1, {sr(sWS,4)}, s28 offen offset:{q*1024}")
    a(f"""
    s_lshr_b32 s30, s{sWAVE}, 1
    s_and_b32 s31, s{sWAVE}, 1
    v_lshrrev_b32 v6, 5, v0
    v_and_b32 v7, 3, v0
    v_bfe_u32 v5, v0, 2, 2
    v_lshl_add_u32 v5, v6, 2, v5
    v_lshlrev_b32 v5, 6, v5
    v_lshl_add_u32 v5, v7, 3, v5
    v_bfe_u32 v8, v0, 4, 1
    v_lshl_add_u32 v5, v8, 5, v5
    s_lshl_b32 s32, s30, 9
    v_add_u32 v{vT}, s32, v5
    s_lshl_b32 s32, s31, 15
    s_add_u32 s32, s32, {K3_O}
    v_add_u32 v{vO}, s32, v1
    v_and_b32 v7, 31, v0
    v_lshlrev_b32 v7, 10, v7
    v_lshl_add_u32 v7, v6, 4, v7
    s_lshl1_add_u32 s33, s{sTB}, s31
    s_lshl_b32 s33, s33, 15
    s_lshl1_add_u32 s34, s{sCB}, s30
    s_lshl_b32 s34, s34, 6
    s_add_u32 s33, s33, s34
    s_waitcnt vmcnt(0)
    """)

    def reads(k):
        b = FR + 8 * (k & 1)
        a(f"ds_read_b64_tr_b16 {vr(b,2)}, v{vT} offset:{K3_W + k*2048}")
        a(f"ds_read_b64_tr_b16 {vr(b+2,2)}, v{vT} offset:{K3_W + k*2048 + 1024}")
        a(f"ds_read_b128 {vr(b+4,4)}, v{vO} offset:{k*1024}")
    for c in range(4):
        a("s_barrier")
        reads(8 * c)
        for kk in range(8):
            k = 8 * c + kk
            if kk < 7:
                reads(k + 1)
                a("s_waitcnt lgkmcnt(3)")
            else:
                a("s_waitcnt lgkmcnt(0)")
            b = FR + 8 * (k & 1)
            mfma(a, ACC, b, b + 4)
    a.nop(16)
    for p in range(8):
        a(f"v_cvt_pk_bf16_f32 v{ACC+p}, v{ACC+2*p}, v{ACC+2*p+1}")
    a("s_nop 1")
    a(f"v_permlane32_swap_b32 v{ACC}, v{ACC+2}")
    a(f"v_permlane32_swap_b32 v{ACC+1}, v{ACC+3}")
    a(f"v_permlane32_swap_b32 v{ACC+4}, v{ACC+6}")
    a(f"v_permlane32_swap_b32 v{ACC+5}, v{ACC+7}")
    a("s_nop 1")
    a(f"buffer_store_dwordx4 {vr(ACC,4)}, v7, {sr(sOUT,4)}, s33 offen")
    a(f"buffer_store_dwordx4 {vr(ACC+4,4)}, v7, {sr(sOUT,4)}, s33 offen offset:32")
    a("s_endpgm")
    a.label("k3_loader")
    a(f"""
    s_sub_u32 s28, s{sWAVE}, 4
    v_bfe_u32 v5, v0, 2, 3
    v_lshrrev_b32 v6, 5, v0
    v_and_b32 v7, 3, v0
    v_lshlrev_b32 v8, 4, v7
    v_lshl_add_u32 v8, v6, 6, v8
    v_lshl_add_u32 v2, v5, 10, v8
    s_lshl_b32 s29, s28, 12
    s_lshl_b32 s30, s28, 15
    s_lshl_b32 s31, s{sCB}, 7
    s_add_u32 s30, s30, s31
    s_lshr_b32 s32, s28, 1
    s_and_b32 s33, s28, 1
    s_lshl_b32 s34, s32, 15
    s_lshl_b32 s35, s33, 12
    s_add_u32 s34, s34, s35
    s_lshl_b32 s35, s{sTB}, 16
    s_add_u32 s35, s35, s34
    s_add_u32 s35, s35, {OF:#x}
    """)
    for c in range(4):
        for i in range(4):
            a(f"s_add_u32 m0, s29, {K3_W + c*16384 + i*1024}")
            a(f"s_add_u32 s36, s30, {(c*128 + i*8)*1024}")
            a(f"buffer_load_dwordx4 v2, {sr(sWO,4)}, s36 offen lds")
            a(f"s_add_u32 m0, s34, {K3_O + c*8192 + i*1024}")
            a(f"s_add_u32 s36, s35, {c*8192 + i*1024}")
            a(f"buffer_load_dwordx4 v1, {sr(sWS,4)}, s36 offen lds")
    for c in range(4):
        a(f"s_waitcnt vmcnt({8*(3-c)})")
        a("s_barrier")
    a.label("k3_end")
    a("s_endpgm")
    return kernel_desc(name, 48, 48)


HEADER = """; Kernarg layout for this problem (88 bytes, ptrs only, base s[0:1]):
"""


def build():
    a = A()
    descs = [gen_k1(a), gen_k2(a), gen_k3(a)]
    out = HEADER
    out += f"; @launch kernel=k1_proj_kernel grid=(256,1,1) block=(512,1,1) lds={K1_LDS}\n"
    out += f"; @launch kernel=k2_attn_kernel grid=(256,1,1) block=(768,1,1) lds={K2_LDS}\n"
    out += f"; @launch kernel=k3_out_kernel grid=(256,1,1) block=(512,1,1) lds={K3_LDS}\n"
    out += '.amdgcn_target "amdgcn-amd-amdhsa--gfx950"\n.text\n'
    out += "\n".join(a.L) + "\n"
    out += '.section .rodata,"a"\n'
    for d in descs:
        out += ".p2align 6\n" + d
    return out


if __name__ == "__main__":
    path = sys.argv[1] if len(sys.argv) > 1 else f"cdna_kernels/{NAME}.s"
    open(path, "w").write(build())
    print("wrote", path)
```

```python
import math, struct, sys

NAME = "gated_mix__softmax_full_mha__dense_activation_mish__prompt"

QF = 0
KF = 2 << 20
VF = 4 << 20
HF = 6 << 20
GB = 14 << 20
OF = 16 << 20
BP = 18 << 20
WS_SIZE = 24 << 20


def f32bits(x):
    return struct.unpack("<I", struct.pack("<f", x))[0]


LOG2E = 1.4426950408889634
QSCALE = 0.25 * LOG2E


class A:
    def __init__(self):
        self.L = []

    def __call__(self, s):
        for ln in s.strip("\n").split("\n"):
            self.L.append("    " + ln.strip())

    def label(self, l):
        self.L.append(l + ":")

    def raw(self, s):
        self.L.append(s)

    def srd(self, d, base, size):
        self(f"s_mov_b32 s{d}, s{base}")
        self(f"s_and_b32 s{d+1}, s{base+1}, 0xffff")
        self(f"s_mov_b32 s{d+2}, {size:#x}")
        self(f"s_mov_b32 s{d+3}, 0x00020000")

    def nop(self, n):
        while n > 0:
            k = min(n, 16)
            self(f"s_nop {k-1}")
            n -= k


PROF = "--prof" in sys.argv
ROT = "--norot" not in sys.argv
ZROWS = "--nozrows" not in sys.argv
NOGEMM = "--nogemm" in sys.argv
PROFB = 22 << 20


def stamp(a, i):
    if not PROF:
        return
    a("s_memtime s[82:83]")
    a("s_waitcnt lgkmcnt(0)")
    a(f"s_mov_b32 s{84+i}, s82")


def stamp_rt(a, i):
    if not PROF:
        return
    a("s_memrealtime s[82:83]")
    a("s_waitcnt lgkmcnt(0)")
    a(f"s_mov_b32 s{84+i}, s82")


def stamp_init(a):
    if not PROF:
        return
    for i in range(16):
        a(f"s_mov_b32 s{84+i}, 0")


def stamp_flush(a, kidx, sWS, sWAVE):
    if not PROF:
        return
    stamp(a, 14)
    stamp_rt(a, 15)
    a("s_mov_b64 exec, 1")
    a(f"s_lshl_b32 s82, s2, 10")
    a(f"s_lshl_b32 s83, s{sWAVE}, 6")
    a(f"s_add_u32 s82, s82, s83")
    a(f"s_add_u32 s82, s82, {PROFB + kidx*256*1024:#x}")
    a("v_mov_b32 v1, 0")
    for i in range(16):
        a(f"v_mov_b32 v2, s{84+i}")
        a(f"buffer_store_dword v2, v1, {sr(sWS,4)}, s82 offen offset:{4*i}")
        a("s_nop 1")


def vr(b, n):
    return f"v[{b}:{b+n-1}]"


def sr(b, n):
    return f"s[{b}:{b+n-1}]"


def mfma(a, d, A_, B_, c=None):
    cs = vr(d, 16) if c is None else (c if isinstance(c, str) else vr(c, 16))
    a(f"v_mfma_f32_32x32x16_bf16 {vr(d,16)}, {vr(A_,4)}, {vr(B_,4)}, {cs}")


def kernel_header(a, name):
    a.raw(f".globl {name}")
    a.raw(".p2align 8")
    a.raw(f".type {name},@function")
    a.label(name)


def kernel_desc(name, vgpr, sgpr):
    if PROF:
        sgpr = 102
    acc = (vgpr + 3) // 4 * 4
    return f""".amdhsa_kernel {name}
  .amdhsa_next_free_vgpr {vgpr}
  .amdhsa_next_free_sgpr {sgpr}
  .amdhsa_accum_offset {acc}
  .amdhsa_group_segment_fixed_size 0
  .amdhsa_kernarg_size 88
  .amdhsa_user_sgpr_count 2
  .amdhsa_user_sgpr_kernarg_segment_ptr 1
  .amdhsa_system_sgpr_workgroup_id_x 1
.end_amdhsa_kernel
"""


K1_STAGE = 45056
K1_X, K1_G0, K1_G1, K1_G2, K1_H = 0, 16384, 24576, 32768, 40960
K1_LDS = 3 * K1_STAGE


def emit_mish_tile(a, acc, tmp, sL, sTwo, sClamp):
    T = tmp
    U = tmp + 8
    P = tmp + 16
    for half in range(2):
        b = acc + 8 * half
        for p in range(4):
            a(f"v_pk_mul_f32 {vr(T+2*p,2)}, {vr(b+2*p,2)}, {sr(sL,2)}")
        for i in range(8):
            a(f"v_min_f32 v{T+i}, s{sClamp}, v{T+i}")
        for i in range(8):
            a(f"v_exp_f32 v{T+i}, v{T+i}")
        for p in range(4):
            a(f"v_pk_add_f32 {vr(U+2*p,2)}, {vr(T+2*p,2)}, {sr(sTwo,2)}")
        for p in range(4):
            a(f"v_pk_mul_f32 {vr(T+2*p,2)}, {vr(T+2*p,2)}, {vr(U+2*p,2)}")
        for p in range(4):
            a(f"v_pk_add_f32 {vr(U+2*p,2)}, {vr(T+2*p,2)}, {sr(sTwo,2)}")
        for i in range(8):
            a(f"v_rcp_f32 v{U+i}, v{U+i}")
        for p in range(4):
            a(f"v_pk_mul_f32 {vr(T+2*p,2)}, {vr(T+2*p,2)}, {vr(U+2*p,2)}")
        for p in range(4):
            a(f"v_pk_mul_f32 {vr(T+2*p,2)}, {vr(T+2*p,2)}, {vr(b+2*p,2)}")
        for p in range(4):
            a(f"v_cvt_pk_bf16_f32 v{P+4*half+p}, v{T+2*p}, v{T+2*p+1}")


def gen_k1(a):
    name = "k1_proj_kernel"
    kernel_header(a, name)
    sX, sWQ, sW1, sWS, sAUX = 4, 8, 12, 16, 20
    sMT, sIDX, sTYPE, sWAVE = 40, 41, 42, 43
    a(f"""
    s_cmp_ge_u32 s2, 256
    s_cbranch_scc1 k1_end
    s_load_dwordx4 s[24:27], s[0:1], 0
    s_load_dwordx4 s[28:31], s[0:1], 32
    s_load_dwordx2 s[32:33], s[0:1], 56
    s_load_dwordx2 s[34:35], s[0:1], 80
    v_lshrrev_b32 v1, 6, v0
    v_and_b32 v0, 63, v0
    s_and_b32 s36, s2, 7
    s_lshr_b32 s37, s2, 3
    v_readfirstlane_b32 s{sWAVE}, v1
    s_and_b32 s38, s36, 1
    s_lshr_b32 s39, s36, 1
    s_and_b32 s{sMT}, s37, 7
    s_lshl3_add_u32 s{sMT}, s38, s{sMT}
    s_lshr_b32 s{sIDX}, s37, 3
    s_lshr_b32 s{sTYPE}, s{sIDX}, 1
    s_and_b32 s{sIDX}, s{sIDX}, 1
    s_lshl1_add_u32 s{sIDX}, s39, s{sIDX}
    """)
    a(f"""
    s_mul_i32 s46, s{sIDX}, 3
    s_add_u32 s46, s46, 32
    s_and_b32 s47, s{sIDX}, 1
    s_add_u32 s44, s46, s47
    s_lshl_b32 s47, s47, 1
    s_sub_u32 s45, s46, s47
    s_add_u32 s45, s45, 2
    s_lshl_b32 s46, s{sIDX}, 2
    s_add_u32 s47, s46, 2
    s_cmp_eq_u32 s{sTYPE}, 0
    s_cselect_b32 s44, s44, s46
    s_cselect_b32 s45, s45, s47
    s_waitcnt lgkmcnt(0)
    """)
    stamp_init(a); stamp(a, 0); stamp_rt(a, 1)
    a.srd(sX, 24, 2048 * 1024)
    a.srd(sWQ, 26, 512 * 3072)
    a.srd(sW1, 28, 512 * 3584)
    a.srd(sWS, 34, WS_SIZE)
    a(f"""
    s_cmp_ge_u32 s{sWAVE}, 4
    s_cbranch_scc1 k1_loader
    """)
    a.srd(sAUX, 30, 1792 * 2)
    sTH, sCH = 48, 49
    a(f"""
    s_lshr_b32 s{sTH}, s{sWAVE}, 1
    s_and_b32 s{sCH}, s{sWAVE}, 1
    """)
    vXA = 8
    vWG, vWH = 16, 17
    vL16 = 18
    vVst = 19
    a(f"""
    v_and_b32 v1, 31, v0
    v_lshrrev_b32 v2, 5, v0
    v_bfe_u32 v3, v0, 1, 3
    v_xor_b32 v3, v3, v2
    v_lshlrev_b32 v3, 4, v3
    v_lshl_add_u32 v3, v1, 7, v3
    s_lshl_b32 s50, s{sTH}, 1
    s_add_u32 s51, s50, s{sCH}
    s_xor_b32 s52, s51, 1
    s_lshl_b32 s53, s51, 12
    s_lshl_b32 s54, s52, 12
    v_add_u32 v{vXA}, s53, v3
    v_add_u32 v{vXA+4}, s54, v3
    """)
    for s in range(1, 4):
        a(f"v_xor_b32 v{vXA+s}, {32*s}, v{vXA}")
        a(f"v_xor_b32 v{vXA+4+s}, {32*s}, v{vXA+4}")
    a(f"""
    v_bfe_u32 v4, v0, 2, 2
    v_and_b32 v5, 3, v0
    v_bfe_u32 v6, v0, 4, 1
    v_lshlrev_b32 v4, 6, v4
    v_lshl_add_u32 v4, v5, 3, v4
    v_lshl_add_u32 v4, v6, 5, v4
    v_lshl_add_u32 v{vWH}, v2, 9, v4
    v_lshl_add_u32 v{vWG}, v2, 10, v4
    s_lshl_b32 s55, s{sCH}, 9
    v_add_u32 v{vWG}, s55, v{vWG}
    v_lshlrev_b32 v{vL16}, 4, v0
    v_and_b32 v5, 15, v0
    v_lshlrev_b32 v5, 4, v5
    v_lshl_add_u32 v5, v2, 8, v5
    v_lshl_add_u32 v{vVst}, v6, 16, v5
    v_lshlrev_b32 v7, 3, v2
    """)
    a(f"""
    s_lshl2_add_u32 s51, s{sMT}, s51
    s_lshl2_add_u32 s52, s{sMT}, s52
    s_mov_b32 s56, {f32bits(LOG2E):#x}
    s_mov_b32 s57, {f32bits(LOG2E):#x}
    s_mov_b32 s58, 2.0
    s_mov_b32 s59, 2.0
    s_mov_b32 s60, {f32bits(30.0):#x}
    s_mov_b32 s62, {f32bits(QSCALE):#x}
    s_mov_b32 s63, {f32bits(QSCALE):#x}
    s_cmp_eq_u32 s{sTYPE}, 0
    s_cbranch_scc0 k1_compR
    """)
    ACC = 32
    FR = 144
    TMP = 192

    def load_bias(ct_sreg_expr_setup, dst_tmp):
        for q in range(4):
            a(f"buffer_load_dwordx2 {vr(dst_tmp+2*q,2)}, v7, {sr(sAUX,4)}, s61 offen offset:{16*q}")

    def unpack_bias(src, accs):
        for q in range(4):
            for acc in accs:
                a(f"v_lshlrev_b32 v{acc+4*q}, 16, v{src+2*q}")
                a(f"v_and_b32 v{acc+4*q+1}, 0xffff0000, v{src+2*q}")
                a(f"v_lshlrev_b32 v{acc+4*q+2}, 16, v{src+2*q+1}")
                a(f"v_and_b32 v{acc+4*q+3}, 0xffff0000, v{src+2*q+1}")

    for typ in ("P", "R"):
        if typ == "R":
            a.label("k1_compR")
        if typ == "P":
            wsrc = [("G", K1_G0), ("G", K1_G1), ("G", K1_G2), ("H", K1_H)]
            tiles = [(0, 0, 0, False), (1, 0, 1, False), (2, 1, 0, False), (3, 1, 1, False),
                     (4, 2, 0, False), (5, 2, 1, False), (6, 3, 0, False)]
        else:
            wsrc = [("G", K1_G0), ("G", K1_G1), ("G", K1_G2)]
            tiles = [(0, 0, 0, True), (1, 0, 1, True), (2, 1, 0, False), (3, 1, 1, False),
                     (4, 2, 0, False), (5, 2, 1, False)]
        acc = lambda t: ACC + 16 * t
        if typ == "P":
            a(f"s_add_u32 s64, s44, s{sCH}")
            a(f"s_mov_b32 s65, s45")
            a(f"s_lshl_b32 s61, s64, 6")
            load_bias(None, TMP)
            a(f"s_lshl_b32 s61, s65, 6")
            load_bias(None, TMP + 8)
            for t in range(4):
                for r in range(16):
                    a(f"v_mov_b32 v{acc(t)+r}, 0")
            a("s_waitcnt vmcnt(0)")
            unpack_bias(TMP, [acc(4), acc(5)])
            unpack_bias(TMP + 8, [acc(6)])
        else:
            a(f"s_add_u32 s64, s44, s{sCH}")
            a(f"s_add_u32 s65, s45, s{sCH}")
            a(f"s_lshl_b32 s61, s64, 6")
            load_bias(None, TMP)
            a(f"s_lshl_b32 s61, s65, 6")
            load_bias(None, TMP + 8)
            for t in range(2):
                for r in range(16):
                    a(f"v_mov_b32 v{acc(t)+r}, 0")
            a("s_waitcnt vmcnt(0)")
            unpack_bias(TMP, [acc(2), acc(3)])
            unpack_bias(TMP + 8, [acc(4), acc(5)])

        def reads(s, fs):
            base = FR + 24 * fs
            out = []
            out.append(f"ds_read_b128 {vr(base,4)}, v{vXA+s} offset:{K1_X}")
            for wi, (kind, off) in enumerate(wsrc):
                for e in range(2):
                    d = base + 8 + 4 * wi + 2 * e
                    if kind == "G":
                        out.append(f"ds_read_b64_tr_b16 {vr(d,2)}, v{vWG} offset:{off + s*2048 + e*256}")
                    else:
                        out.append(f"ds_read_b64_tr_b16 {vr(d,2)}, v{vWH} offset:{off + s*1024 + e*256}")
                if wi == 0:
                    out.append(f"ds_read_b128 {vr(base+4,4)}, v{vXA+4+s} offset:{K1_X}")
            return out

        def step(fs, rd):
            base = FR + 24 * fs
            rd = list(rd)
            for ti, (t, wi, xi, sw) in enumerate(tiles):
                W = base + 8 + 4 * wi
                X = base + 4 * xi
                if sw:
                    mfma(a, acc(t), X, W)
                else:
                    mfma(a, acc(t), W, X)
                for _ in range(2):
                    if rd:
                        a(rd.pop(0))
            assert not rd

        a("s_mov_b32 s66, 0")
        a("s_mov_b32 s67, 0")
        a(f"s_mov_b32 s72, {K1_STAGE}")
        stamp(a, 2)
        a("s_barrier")
        stamp(a, 3)
        for r in reads(0, 0):
            a(r)
        a.label(f"k1_loop{typ}")
        for s in range(3):
            a("s_waitcnt lgkmcnt(0)")
            step(s & 1, reads(s + 1, (s + 1) & 1))
        a(f"""
        s_add_u32 s66, s66, 1
        s_cmp_eq_u32 s66, 3
        s_cselect_b32 s68, {(-2*K1_STAGE) & 0xffffffff:#x}, s72
        s_cselect_b32 s66, 0, s66
        s_waitcnt lgkmcnt(0)
        s_barrier
        """)
        for i in range(10):
            a(f"v_add_u32 v{vXA+i}, s68, v{vXA+i}")
        step(1, reads(0, 0))
        a(f"""
        s_add_u32 s67, s67, 1
        s_cmp_lt_u32 s67, 8
        s_cbranch_scc1 k1_loop{typ}
        s_waitcnt lgkmcnt(0)
        """)
        a.nop(16)
        stamp(a, 4)
        P = TMP + 16
        if typ == "P":
            a(f"s_lshl1_add_u32 s69, s{sIDX}, s{sCH}")
            a(f"s_lshl_b32 s69, s69, 17")
            for t in range(4):
                isq = t < 2
                tok = 51 if (t & 1) == 0 else 52
                b = acc(t)
                if isq:
                    for p in range(8):
                        a(f"v_pk_mul_f32 {vr(b+2*p,2)}, {vr(b+2*p,2)}, {sr(62,2)}")
                for p in range(8):
                    a(f"v_cvt_pk_bf16_f32 v{b+p}, v{b+2*p}, v{b+2*p+1}")
                a(f"s_lshl_b32 s70, s{tok}, 10")
                a(f"s_add_u32 s70, s70, s69")
                a(f"s_add_u32 s70, s70, {QF if isq else KF:#x}")
                a(f"s_add_u32 s71, s70, 0x10000")
                a(f"buffer_store_dwordx4 {vr(b,4)}, v{vL16}, {sr(sWS,4)}, s70 offen")
                a(f"buffer_store_dwordx4 {vr(b+4,4)}, v{vL16}, {sr(sWS,4)}, s71 offen")
            ftiles = [(4, 51, 64), (5, 52, 64), (6, 51, 65)]
        else:
            a(f"s_lshl1_add_u32 s69, s{sIDX}, s{sCH}")
            a(f"s_lshl_b32 s69, s69, 17")
            for t in range(2):
                tok = 51 if t == 0 else 52
                b = acc(t)
                for p in range(8):
                    a(f"v_cvt_pk_bf16_f32 v{b+p}, v{b+2*p}, v{b+2*p+1}")
                a(f"s_lshl_b32 s70, s{tok}, 10")
                a(f"s_add_u32 s70, s70, s69")
                a(f"s_add_u32 s70, s70, {VF:#x}")
                a(f"buffer_store_dwordx4 {vr(b,4)}, v{vVst}, {sr(sWS,4)}, s70 offen")
                a(f"buffer_store_dwordx4 {vr(b+4,4)}, v{vVst}, {sr(sWS,4)}, s70 offen offset:512")
            ftiles = [(2, 51, 64), (3, 52, 64), (4, 51, 65), (5, 52, 65)]
        for fi, (t, tok, ct) in enumerate(ftiles):
            tmp = TMP if fi % 2 == 0 else FR
            emit_mish_tile(a, acc(t), tmp, 56, 58, 60)
            a(f"s_mul_i32 s70, s{tok}, 112")
            a(f"s_lshl1_add_u32 s70, s{ct}, s70")
            a(f"s_lshl_b32 s70, s70, 10")
            a(f"s_add_u32 s70, s70, {HF:#x}")
            a(f"buffer_store_dwordx4 {vr(tmp+16,4)}, v{vL16}, {sr(sWS,4)}, s70 offen")
            a(f"buffer_store_dwordx4 {vr(tmp+20,4)}, v{vL16}, {sr(sWS,4)}, s70 offen offset:1024")
        stamp(a, 5)
        if PROF:
            a("s_waitcnt vmcnt(0)")
        stamp_flush(a, 0, sWS, sWAVE)
        a("s_endpgm")

    a.label("k1_loader")
    a.srd(sAUX, 32, 512 * 2)
    sLW = 48
    vXe, vXo, vWq, vWf, vH = 8, 9, 10, 11, 12
    a(f"""
    s_sub_u32 s{sLW}, s{sWAVE}, 4
    v_lshrrev_b32 v1, 3, v0
    v_and_b32 v2, 7, v0
    v_lshrrev_b32 v3, 4, v0
    v_xor_b32 v2, v2, v3
    v_lshlrev_b32 v2, 4, v2
    v_lshl_add_u32 v{vXe}, v1, 10, v2
    v_xor_b32 v{vXo}, 64, v{vXe}
    v_bfe_u32 v1, v0, 2, 3
    v_lshrrev_b32 v2, 5, v0
    v_and_b32 v3, 3, v0
    v_lshlrev_b32 v3, 4, v3
    v_lshl_add_u32 v2, v2, 6, v3
    s_movk_i32 s50, 3072
    s_movk_i32 s51, 3584
    v_mad_u32_u24 v{vWq}, v1, s50, v2
    v_mad_u32_u24 v{vWf}, v1, s51, v2
    v_lshrrev_b32 v1, 2, v0
    v_mad_u32_u24 v{vH}, v1, s51, v3
    """)
    a(f"""
    s_lshl_b32 s52, s{sMT}, 17
    s_lshl_b32 s57, s{sLW}, 15
    s_add_u32 s52, s52, s57
    s_mul_i32 s58, s{sLW}, {16*3072}
    s_mul_i32 s59, s{sLW}, {16*3584}
    s_lshl_b32 s60, s{sIDX}, 7
    s_add_u32 s53, s58, s60
    s_lshl_b32 s61, s44, 6
    s_lshl_b32 s62, s45, 6
    s_lshl_b32 s63, s{sLW}, 12
    s_lshl_b32 s64, s{sLW}, 11
    s_lshl_b32 s65, s{sLW}, 10
    s_lshr_b32 s67, s37, 3
    s_lshl1_add_u32 s67, s67, s{sMT}
    s_and_b32 s67, s67, {7 if ROT else 0}
    s_cmp_eq_u32 s{sTYPE}, 0
    s_cbranch_scc0 k1_loadR
    """)
    for typ in ("P", "R"):
        if typ == "R":
            a.label("k1_loadR")
        if typ == "P":
            a(f"""
            s_add_u32 s54, s53, 1024
            s_add_u32 s55, s59, s61
            s_add_u32 s56, s59, s62
            """)
            groups = [(53, vWq, sWQ, 3072, K1_G0), (54, vWq, sWQ, 3072, K1_G1), (55, vWf, sW1, 3584, K1_G2)]
        else:
            a(f"""
            s_add_u32 s53, s53, 2048
            s_add_u32 s54, s59, s61
            s_add_u32 s55, s59, s62
            """)
            groups = [(53, vWq, sWQ, 3072, K1_G0), (54, vWf, sW1, 3584, K1_G1), (55, vWf, sW1, 3584, K1_G2)]
        n = 11 if typ == "P" else 10

        def issue(c):
            st = (c % 3) * K1_STAGE
            a(f"s_add_u32 s68, s67, {c}")
            a(f"s_and_b32 s68, s68, 7")
            a(f"s_lshl_b32 s69, s68, 7")
            a(f"s_add_u32 s69, s69, s52")
            a(f"s_mul_i32 s70, s68, {64*3072}")
            a(f"s_mul_i32 s71, s68, {64*3584}")
            for i in range(4):
                a(f"s_add_u32 m0, s63, {st + K1_X + i*1024}")
                a(f"s_add_u32 s66, s69, {i*8192}")
                a(f"buffer_load_dwordx4 v{vXe if i % 2 == 0 else vXo}, {sr(sX,4)}, s66 offen lds")
            for (sg, vw, srd, pitch, goff) in groups:
                a(f"s_add_u32 s72, s{sg}, s{70 if pitch == 3072 else 71}")
                for bb in range(2):
                    a(f"s_add_u32 m0, s64, {st + goff + bb*1024}")
                    a(f"s_add_u32 s66, s72, {8*bb*pitch}")
                    a(f"buffer_load_dwordx4 v{vw}, {sr(srd,4)}, s66 offen lds")
            if typ == "P":
                a(f"s_add_u32 m0, s65, {st + K1_H}")
                a(f"s_add_u32 s66, s56, s71")
                a(f"buffer_load_dwordx4 v{vH}, {sr(sW1,4)}, s66 offen lds")

        issue(0); issue(1); issue(2)
        stamp(a, 2)
        for c in range(8):
            allowed = 2 * n if c == 0 else (n if c < 7 else 0)
            a(f"s_waitcnt vmcnt({allowed})")
            stamp(a, 3 + c)
            a("s_barrier")
            if 1 <= c and c + 2 <= 7:
                issue(c + 2)
        if typ == "P":
            a("s_branch k1_gate")
    a.label("k1_gate")
    a(f"""
    s_cmp_lg_u32 s{sLW}, 0
    s_cbranch_scc1 k1_lastbar
    s_lshl3_add_u32 s66, s{sTYPE}, s{sIDX}
    s_lshl4_add_u32 s66, s{sMT}, s66
    s_lshl_b32 s67, s66, 13
    v_lshrrev_b32 v1, 3, v0
    v_and_b32 v2, 7, v0
    v_lshlrev_b32 v2, 4, v2
    v_lshl_add_u32 v3, v1, 10, v2
    """)
    for i in range(8):
        a(f"buffer_load_dwordx4 {vr(16+4*i,4)}, v3, {sr(sX,4)}, s67 offen offset:{128*i}")
        a(f"buffer_load_dwordx4 {vr(48+4*i,4)}, v2, {sr(sAUX,4)}, 0 offen offset:{128*i}")
    a("v_mov_b32 v4, 0")
    a("v_mov_b32 v5, 0")
    a("s_waitcnt vmcnt(0)")
    for i in range(32):
        a(f"v_dot2_f32_bf16 v{4 + (i&1)}, v{16+i}, v{48+i}, v{4 + (i&1)}")
    a.nop(4)
    a(f"""
    v_add_f32 v4, v4, v5
    s_nop 1
    v_add_f32_dpp v4, v4, v4 quad_perm:[1,0,3,2] row_mask:0xf bank_mask:0xf
    s_nop 1
    v_add_f32_dpp v4, v4, v4 quad_perm:[2,3,0,1] row_mask:0xf bank_mask:0xf
    s_nop 1
    v_add_f32_dpp v4, v4, v4 row_half_mirror row_mask:0xf bank_mask:0xf
    v_mul_f32 v4, {f32bits(-LOG2E):#x}, v4
    v_exp_f32 v4, v4
    s_nop 0
    v_add_f32 v4, 1.0, v4
    v_rcp_f32 v4, v4
    v_lshlrev_b32 v1, 2, v1
    s_lshl_b32 s67, s66, 5
    s_add_u32 s67, s67, {GB:#x}
    buffer_store_dword v4, v1, {sr(sWS,4)}, s67 offen
    """)
    a.label("k1_lastbar")
    a("s_barrier")
    stamp_flush(a, 0, sWS, sWAVE)
    a.label("k1_end")
    a("s_endpgm")
    return kernel_desc(name, 216, 80)


K2_K, K2_V, K2_RING = 0, 65536, 131072
K2_LDS = 163840


def gen_k2(a):
    name = "k2_attn_kernel"
    kernel_header(a, name)
    sWS, sW2 = 4, 8
    sWAVE, sHEAD, sQB = 20, 21, 22
    a(f"""
    s_cmp_ge_u32 s2, 256
    s_cbranch_scc1 k2_end
    s_load_dwordx2 s[12:13], s[0:1], 48
    s_load_dwordx2 s[14:15], s[0:1], 80
    v_lshrrev_b32 v1, 6, v0
    v_and_b32 v0, 63, v0
    s_and_b32 s16, s2, 7
    s_lshr_b32 s17, s2, 3
    v_readfirstlane_b32 s{sWAVE}, v1
    s_and_b32 s18, s17, 3
    s_lshl2_add_u32 s{sHEAD}, s16, s18
    s_lshr_b32 s{sQB}, s17, 2
    v_lshlrev_b32 v1, 4, v0
    s_waitcnt lgkmcnt(0)
    """)
    stamp_init(a); stamp(a, 0); stamp_rt(a, 1)
    a.srd(sWS, 14, WS_SIZE)
    a.srd(sW2, 12, 1792 * 1024)
    a(f"""
    s_cmp_ge_u32 s{sWAVE}, 8
    s_cbranch_scc1 k2_gemm
    """)
    vL16 = 1
    vKA, vVA = 2, 3
    vG = 4
    Q = 8
    KFR = 12
    VFR = 16
    P0, P1 = 24, 28
    CM = 32
    SA, SB = 48, 64
    O = 80
    sMASK = 24
    sRETRY = 26
    sIT = 27
    a(f"""
    s_lshl_b32 s28, s{sHEAD}, 16
    s_lshl_b32 s29, s{sWAVE}, 10
    s_add_u32 s28, s28, s29
    s_lshl3_add_u32 s30, s{sQB}, s{sWAVE}
    s_lshl_b32 s31, s30, 10
    s_lshl_b32 s32, s{sHEAD}, 16
    s_add_u32 s31, s31, s32
    """)
    def dma(j):
        a(f"s_add_u32 m0, s29, {K2_K + j*8192}")
        a(f"s_add_u32 s33, s28, {KF + j*8192:#x}")
        a(f"buffer_load_dwordx4 v{vL16}, {sr(sWS,4)}, s33 offen lds")
        a(f"s_add_u32 m0, s29, {K2_V + j*8192}")
        a(f"s_add_u32 s33, s28, {VF + j*8192:#x}")
        a(f"buffer_load_dwordx4 v{vL16}, {sr(sWS,4)}, s33 offen lds")
    a(f"buffer_load_dwordx4 {vr(Q,4)}, v{vL16}, {sr(sWS,4)}, s31 offen")
    dma(0)
    a(f"""
    v_and_b32 v5, 31, v0
    v_lshlrev_b32 v5, 2, v5
    s_lshl_b32 s33, s30, 7
    s_add_u32 s33, s33, {GB:#x}
    buffer_load_dword v{vG}, v5, {sr(sWS,4)}, s33 offen
    """)
    a(f"""
    v_and_b32 v5, 15, v0
    v_lshrrev_b32 v6, 5, v0
    v_lshlrev_b32 v5, 4, v5
    v_lshl_add_u32 v5, v6, 8, v5
    v_add_u32 v7, {K2_V}, v5
    s_mov_b32 s{sMASK}, 0x0000ffff
    s_mov_b32 s{sMASK+1}, 0x0000ffff
    s_mov_b32 s{sRETRY}, 0
    """)
    if ZROWS:
        a(f"""
        v_and_b32 v5, 27, v0
        v_cmp_eq_u32 vcc, 16, v5
        v_mov_b32 v5, 0x3f803f80
        s_nop 1
        v_cndmask_b32 v5, 0, v5, vcc
        """)
        for r in range(8):
            a(f"v_mov_b32 v{VFR+r}, v5")
    else:
        for r in range(8):
            a(f"v_mov_b32 v{VFR+r}, 0x3f803f80")
    a("s_waitcnt vmcnt(1)")
    stamp(a, 2)
    a("s_barrier")
    stamp(a, 3)
    a(f"ds_read_b128 {vr(KFR,4)}, v{vL16} offset:{K2_K}")
    a("s_waitcnt lgkmcnt(0)")
    mfma(a, SA, KFR, Q, "0")
    a.nop(16)

    def reduce_max(src, dst):
        a(f"v_max3_f32 v{dst}, v{src}, v{src+1}, v{src+2}")
        for i in range(3, 15, 2):
            a(f"v_max3_f32 v{dst}, v{dst}, v{src+i}, v{src+i+1}")
        a(f"v_max_f32 v{dst}, v{dst}, v{src+15}")
    reduce_max(SA, 5)
    a.label("k2_setmax")
    a(f"""
    v_mov_b32 v6, v5
    s_nop 1
    v_permlane32_swap_b32 v5, v6
    s_nop 1
    v_max_f32 v5, v5, v6
    v_sub_f32 v5, 0, v5
    """)
    for r in range(16):
        a(f"v_mov_b32 v{CM+r}, v5")
    for r in range(16):
        a(f"v_mov_b32 v{O+r}, 0")
    a(f"""
    v_mov_b32 v{vKA}, v{vL16}
    v_mov_b32 v{vVA}, v7
    ds_read_b128 {vr(KFR,4)}, v{vKA} offset:{K2_K}
    """)
    for r in range(4):
        a(f"v_mov_b32 v{P1+r}, 0")
    a("s_waitcnt lgkmcnt(0)")
    mfma(a, SA, KFR, Q, CM)
    a(f"ds_read_b128 {vr(KFR,4)}, v{vKA} offset:{K2_K+1024}")
    a(f"s_mov_b32 s{sIT}, 0")
    a("s_setprio 2")
    a.nop(12)
    a.label("k2_loop")
    U = 8
    for u in range(U):
        S = SA if u % 2 == 0 else SB
        Sn = SB if u % 2 == 0 else SA
        ex = lambda i: a(f"v_exp_f32 v{S+i}, v{S+i}")
        cv = lambda p: a(f"v_cvt_pk_bf16_f32 v{P0+p}, v{S+2*p}, v{S+2*p+1}")
        ex(0); ex(1)
        mfma(a, O, VFR + 4, P1)
        a(f"s_mov_b64 exec, {sr(sMASK,2)}")
        a(f"ds_read_b128 {vr(VFR,4)}, v{vVA} offset:{u*1024}")
        a(f"ds_read_b128 {vr(VFR+4,4)}, v{vVA} offset:{u*1024+512}")
        a("s_mov_b64 exec, -1")
        ex(2); ex(3); ex(4); ex(5); ex(6); ex(7)
        if u == U - 2:
            a(f"s_cmp_eq_u32 s{sIT}, 0")
            a(f"s_cbranch_scc0 k2_nobar")
            a(f"s_cmp_eq_u32 s{sRETRY}, 0")
            a(f"s_cbranch_scc0 k2_nobar")
            stamp(a, 4)
            a("s_barrier")
            stamp(a, 5)
            a.label("k2_nobar")
        a("s_waitcnt lgkmcnt(2)")
        mfma(a, Sn, KFR, Q, CM)
        a(f"ds_read_b128 {vr(KFR,4)}, v{vKA} offset:{K2_K + (u+2)*1024}")
        cv(0); cv(1); cv(2)
        ex(8)
        cv(3)
        ex(9); ex(10); ex(11)
        a("s_waitcnt lgkmcnt(1)")
        mfma(a, O, VFR, P0)
        ex(12); ex(13); ex(14); ex(15)
        cv(4); cv(5); cv(6); cv(7)
    a(f"""
    v_add_u32 v{vKA}, {U*1024}, v{vKA}
    v_add_u32 v{vVA}, {U*1024}, v{vVA}
    s_add_u32 s{sIT}, s{sIT}, 1
    s_cmp_eq_u32 s{sIT}, 4
    s_cbranch_scc0 k2_np1
    s_setprio 1
    """)
    a.label("k2_np1")
    a(f"""
    s_cmp_lt_u32 s{sIT}, 6
    s_cbranch_scc1 k2_loop
    s_cmp_eq_u32 s{sIT}, 8
    s_cbranch_scc1 k2_np2
    s_cmp_eq_u32 s{sIT}, 6
    s_cbranch_scc1 k2_np3
    s_setprio 0
    """)
    a.label("k2_np3")
    a(f"""
    s_cmp_eq_u32 s{sRETRY}, 0
    s_cbranch_scc0 k2_np2
    """)
    stamp(a, 6)
    a("s_barrier")
    stamp(a, 7)
    a.label("k2_np2")
    a(f"""
    s_cmp_lt_u32 s{sIT}, 8
    s_cbranch_scc1 k2_loop
    """)
    mfma(a, O, VFR + 4, P1)
    a("s_waitcnt lgkmcnt(0)")
    a.nop(16)
    a(f"""
    v_max3_f32 v5, abs(v{O}), abs(v{O+1}), abs(v{O+2})
    v_max3_f32 v5, v5, abs(v{O+3}), abs(v{O+4})
    v_max3_f32 v5, v5, abs(v{O+5}), abs(v{O+6})
    v_max_f32 v5, v5, abs(v{O+7})
    v_add_f32 v6, v{O}, v{O+1}
    v_add_f32 v6, v6, v{O+2}
    v_add_f32 v6, v6, v{O+3}
    v_add_f32 v6, v6, v{O+4}
    v_add_f32 v6, v6, v{O+5}
    v_add_f32 v6, v6, v{O+6}
    v_add_f32 v6, v6, v{O+7}
    s_mov_b32 s34, {f32bits(2.0**64):#x}
    s_mov_b32 s35, {f32bits(2.0**120):#x}
    v_cmp_nlt_f32 vcc, v{O+8}, s34
    v_cmp_nlt_f32 s[36:37], v5, s35
    v_cmp_u_f32 s[38:39], v6, v6
    s_or_b64 vcc, vcc, s[36:37]
    s_or_b64 vcc, vcc, s[38:39]
    s_cmp_eq_u64 vcc, 0
    s_cbranch_scc1 k2_fin
    s_cmp_eq_u32 s{sRETRY}, 0
    s_cbranch_scc0 k2_fin
    """)
    a(f"""
    s_mov_b32 s{sRETRY}, 1
    s_mov_b32 s{sIT}, 0
    v_mov_b32 v{vKA}, v{vL16}
    v_mov_b32 v5, 0xff800000
    """)
    a.label("k2_maxloop")
    a(f"ds_read_b128 {vr(KFR,4)}, v{vKA} offset:{K2_K}")
    a("s_waitcnt lgkmcnt(0)")
    mfma(a, SA, KFR, Q, "0")
    a(f"v_add_u32 v{vKA}, 1024, v{vKA}")
    a.nop(16)
    for i in range(0, 16, 2):
        a(f"v_max3_f32 v5, v5, v{SA+i}, v{SA+i+1}")
    a(f"""
    s_add_u32 s{sIT}, s{sIT}, 1
    s_cmp_lt_u32 s{sIT}, 64
    s_cbranch_scc1 k2_maxloop
    s_branch k2_setmax
    """)
    a.label("k2_fin")
    a(f"""
    s_waitcnt vmcnt(0)
    v_rcp_f32 v5, v{O+8}
    s_lshl_b32 s33, s30, 15
    s_lshl_b32 s34, s{sHEAD}, 10
    v_mul_f32 v5, v5, v{vG}
    s_add_u32 s33, s33, s34
    s_add_u32 s33, s33, {OF:#x}
    """)
    for r in range(8):
        a(f"v_mul_f32 v{O+r}, v{O+r}, v5")
    for p in range(4):
        a(f"v_cvt_pk_bf16_f32 v{O+p}, v{O+2*p}, v{O+2*p+1}")
    a(f"buffer_store_dwordx4 {vr(O,4)}, v{vL16}, {sr(sWS,4)}, s33 offen")
    stamp_flush(a, 1, sWS, sWAVE)
    a("s_endpgm")

    a.label("k2_gemm")
    sGW, sTB, sCB = 24, 25, 26
    ACC = 32
    HB = 96
    WB = 136
    vD, vT = 2, 3
    NST = 28
    PD = 4
    a(f"""
    s_setprio 3
    s_sub_u32 s{sGW}, s{sWAVE}, 8
    s_lshr_b32 s27, s17, 3
    s_lshl2_add_u32 s{sTB}, s16, s27
    s_and_b32 s{sCB}, s17, 7
    s_lshl_b32 s34, s{sHEAD}, 16
    s_lshl_b32 s35, s{sGW}, 10
    s_add_u32 s34, s34, s35
    """)
    for j in range(14):
        if j == 4:
            a("s_barrier")
        t = 8 + 4 * j
        a(f"s_add_u32 m0, s35, {K2_K + t*1024}")
        a(f"s_add_u32 s33, s34, {KF + t*1024:#x}")
        a(f"buffer_load_dwordx4 v1, {sr(sWS,4)}, s33 offen lds")
        a(f"s_add_u32 m0, s35, {K2_V + t*1024}")
        a(f"s_add_u32 s33, s34, {VF + t*1024:#x}")
        a(f"buffer_load_dwordx4 v1, {sr(sWS,4)}, s33 offen lds")
    a(f"""
    v_bfe_u32 v5, v0, 2, 3
    v_lshrrev_b32 v6, 5, v0
    v_and_b32 v7, 3, v0
    v_lshlrev_b32 v8, 4, v7
    v_lshl_add_u32 v8, v6, 6, v8
    v_lshl_add_u32 v{vD}, v5, 10, v8
    v_bfe_u32 v5, v0, 2, 2
    v_lshl_add_u32 v5, v6, 2, v5
    v_lshlrev_b32 v5, 6, v5
    v_lshl_add_u32 v5, v7, 3, v5
    v_bfe_u32 v8, v0, 4, 1
    v_lshl_add_u32 v5, v8, 5, v5
    s_lshl_b32 s28, s{sGW}, 13
    s_add_u32 s28, s28, {K2_RING}
    v_add_u32 v{vT}, s28, v5
    s_mul_i32 s29, s{sGW}, {448*1024}
    s_lshl_b32 s30, s{sCB}, 7
    s_add_u32 s29, s29, s30
    s_mul_i32 s31, s{sTB}, {2*112}
    s_mul_i32 s32, s{sGW}, {NST}
    s_add_u32 s31, s31, s32
    s_lshl_b32 s31, s31, 10
    s_add_u32 s31, s31, {HF:#x}
    s_add_u32 s32, s31, {112*1024}
    """)

    def issue_list(k):
        slot = k % PD
        hs = k % (PD + 1)
        out = []
        for e in range(2):
            out.append(f"s_add_u32 m0, s28, {slot*2048 + e*1024}\n"
                       f"s_add_u32 s33, s29, {(16*k + 8*e)*1024}\n"
                       f"buffer_load_dwordx4 v{vD}, {sr(sW2,4)}, s33 offen lds")
        out.append(f"s_add_u32 s33, s31, {k*1024}\n"
                   f"buffer_load_dwordx4 {vr(HB+8*hs,4)}, v1, {sr(sWS,4)}, s33 offen")
        out.append(f"s_add_u32 s33, s32, {k*1024}\n"
                   f"buffer_load_dwordx4 {vr(HB+8*hs+4,4)}, v1, {sr(sWS,4)}, s33 offen")
        return out

    for k in range(PD):
        for x in issue_list(k):
            a(x)
    for r in range(64):
        a(f"v_mov_b32 v{ACC+r}, 0")
    a(f"s_waitcnt vmcnt({4*PD})")
    stamp(a, 4)
    a("s_barrier")
    stamp(a, 5)
    for k in range(NST if not NOGEMM else 0):
        slot = k % PD
        hs = k % (PD + 1)
        a(f"s_waitcnt vmcnt({4 * min(PD - 1, NST - 1 - k)})")
        for ct in range(2):
            for e in range(2):
                a(f"ds_read_b64_tr_b16 {vr(WB+4*ct+2*e,2)}, v{vT} offset:{slot*2048 + e*1024 + ct*512}")
        a("s_waitcnt lgkmcnt(0)")
        il = issue_list(k + PD) if k + PD < NST else []
        for ct in range(2):
            for tt in range(2):
                mfma(a, ACC + 32*ct + 16*tt, WB + 4*ct, HB + 8*hs + 4*tt)
                if il:
                    a(il.pop(0))
        if k in (9, 18):
            stamp(a, 8 + k // 9)
    stamp(a, 11)
    a(f"""
    v_and_b32 v6, 31, v0
    v_lshlrev_b32 v6, 2, v6
    s_and_b32 s34, s{sGW}, 1
    s_lshl1_add_u32 s33, s{sTB}, s34
    s_lshl_b32 s33, s33, 7
    s_add_u32 s33, s33, {GB:#x}
    buffer_load_dword v4, v6, {sr(sWS,4)}, s33 offen
    v_add_u32 v6, s28, v1
    s_xor_b32 s33, s28, 0x4000
    v_add_u32 v7, s33, v1
    s_xor_b32 s33, s28, 0x6000
    v_add_u32 v8, s33, v1
    """)
    a.nop(16)
    a(f"s_cmp_ge_u32 s{sGW}, 2")
    a("s_cbranch_scc1 k2_r1hi")
    for q in range(8):
        a(f"ds_write_b128 v6, {vr(ACC+32+4*q,4)} offset:{q*1024}")
    a("s_branch k2_r1done")
    a.label("k2_r1hi")
    for q in range(8):
        a(f"ds_write_b128 v6, {vr(ACC+4*q,4)} offset:{q*1024}")
    a("s_nop 1")
    for r in range(32):
        a(f"v_mov_b32 v{ACC+r}, v{ACC+32+r}")
    a.label("k2_r1done")
    a("s_waitcnt lgkmcnt(0)")
    stamp(a, 6)
    a("s_barrier")
    for q in range(8):
        a(f"ds_read_b128 {vr(ACC+32+4*q,4)}, v7 offset:{q*1024}")
    a("s_waitcnt lgkmcnt(0)")
    for r in range(32):
        a(f"v_add_f32 v{ACC+r}, v{ACC+r}, v{ACC+32+r}")
    a(f"s_bitcmp1_b32 s{sGW}, 0")
    a("s_cbranch_scc1 k2_r2hi")
    for q in range(4):
        a(f"ds_write_b128 v7, {vr(ACC+16+4*q,4)} offset:{q*1024}")
    a("s_branch k2_r2done")
    a.label("k2_r2hi")
    for q in range(4):
        a(f"ds_write_b128 v7, {vr(ACC+4*q,4)} offset:{q*1024}")
    a("s_nop 1")
    for r in range(16):
        a(f"v_mov_b32 v{ACC+r}, v{ACC+16+r}")
    a.label("k2_r2done")
    a(f"""
    s_lshl_b32 s33, s{sGW}, 12
    s_lshl3_add_u32 s34, s{sTB}, s{sCB}
    s_lshl_b32 s34, s34, 14
    s_add_u32 s34, s34, s33
    s_add_u32 s34, s34, {BP:#x}
    s_waitcnt vmcnt(0) lgkmcnt(0)
    s_barrier
    """)
    stamp(a, 7)
    for q in range(4):
        a(f"ds_read_b128 {vr(ACC+16+4*q,4)}, v8 offset:{q*1024}")
    a("v_sub_f32 v4, 1.0, v4")
    a("s_waitcnt lgkmcnt(0)")
    for r in range(16):
        a(f"v_add_f32 v{ACC+r}, v{ACC+r}, v{ACC+16+r}")
    for r in range(16):
        a(f"v_mul_f32 v{ACC+r}, v{ACC+r}, v4")
    for q in range(4):
        a(f"buffer_store_dwordx4 {vr(ACC+4*q,4)}, v1, {sr(sWS,4)}, s34 offen offset:{q*1024}")
    stamp_flush(a, 1, sWS, sWAVE)
    a.label("k2_end")
    a("s_endpgm")
    return kernel_desc(name, 144, 48)


K3_W, K3_O = 0, 65536
K3_LDS = 131072


def gen_k3(a):
    name = "k3_out_kernel"
    kernel_header(a, name)
    sWS, sWO, sOUT = 4, 8, 12
    sWAVE, sTB, sCB = 24, 25, 26
    a(f"""
    s_cmp_ge_u32 s2, 256
    s_cbranch_scc1 k3_end
    s_load_dwordx2 s[16:17], s[0:1], 16
    s_load_dwordx2 s[18:19], s[0:1], 64
    s_load_dwordx2 s[20:21], s[0:1], 80
    v_lshrrev_b32 v1, 6, v0
    v_and_b32 v0, 63, v0
    s_and_b32 s22, s2, 7
    s_lshr_b32 s23, s2, 3
    v_readfirstlane_b32 s{sWAVE}, v1
    s_lshr_b32 s27, s23, 3
    s_lshl2_add_u32 s{sTB}, s22, s27
    s_and_b32 s{sCB}, s23, 7
    v_lshlrev_b32 v1, 4, v0
    s_waitcnt lgkmcnt(0)
    """)
    stamp_init(a); stamp(a, 0); stamp_rt(a, 1)
    a.srd(sWS, 20, WS_SIZE)
    a.srd(sWO, 16, 512 * 1024)
    a.srd(sOUT, 18, 2048 * 1024)
    a(f"""
    s_cmp_ge_u32 s{sWAVE}, 4
    s_cbranch_scc1 k3_loader
    """)
    ACC, FR = 16, 32
    vT, vO = 2, 3
    a(f"""
    s_lshl3_add_u32 s28, s{sTB}, s{sCB}
    s_lshl_b32 s28, s28, 14
    s_lshl_b32 s29, s{sWAVE}, 12
    s_add_u32 s28, s28, s29
    s_add_u32 s28, s28, {BP:#x}
    """)
    for q in range(4):
        a(f"buffer_load_dwordx4 {vr(ACC+4*q,4)}, v1, {sr(sWS,4)}, s28 offen offset:{q*1024}")
    a(f"""
    s_lshr_b32 s30, s{sWAVE}, 1
    s_and_b32 s31, s{sWAVE}, 1
    v_lshrrev_b32 v6, 5, v0
    v_and_b32 v7, 3, v0
    v_bfe_u32 v5, v0, 2, 2
    v_lshl_add_u32 v5, v6, 2, v5
    v_lshlrev_b32 v5, 6, v5
    v_lshl_add_u32 v5, v7, 3, v5
    v_bfe_u32 v8, v0, 4, 1
    v_lshl_add_u32 v5, v8, 5, v5
    s_lshl_b32 s32, s30, 9
    v_add_u32 v{vT}, s32, v5
    s_lshl_b32 s32, s31, 15
    s_add_u32 s32, s32, {K3_O}
    v_add_u32 v{vO}, s32, v1
    v_and_b32 v7, 31, v0
    v_lshlrev_b32 v7, 10, v7
    v_lshl_add_u32 v7, v6, 4, v7
    s_lshl1_add_u32 s33, s{sTB}, s31
    s_lshl_b32 s33, s33, 15
    s_lshl1_add_u32 s34, s{sCB}, s30
    s_lshl_b32 s34, s34, 6
    s_add_u32 s33, s33, s34
    s_waitcnt vmcnt(0)
    """)

    def reads(k):
        b = FR + 8 * (k & 1)
        a(f"ds_read_b64_tr_b16 {vr(b,2)}, v{vT} offset:{K3_W + k*2048}")
        a(f"ds_read_b64_tr_b16 {vr(b+2,2)}, v{vT} offset:{K3_W + k*2048 + 1024}")
        a(f"ds_read_b128 {vr(b+4,4)}, v{vO} offset:{k*1024}")
    for c in range(4):
        stamp(a, 2 + 2 * c)
        a("s_barrier")
        stamp(a, 3 + 2 * c)
        reads(8 * c)
        for kk in range(8):
            k = 8 * c + kk
            if kk < 7:
                reads(k + 1)
                a("s_waitcnt lgkmcnt(3)")
            else:
                a("s_waitcnt lgkmcnt(0)")
            b = FR + 8 * (k & 1)
            mfma(a, ACC, b, b + 4)
    a.nop(16)
    for p in range(8):
        a(f"v_cvt_pk_bf16_f32 v{ACC+p}, v{ACC+2*p}, v{ACC+2*p+1}")
    a("s_nop 1")
    a(f"v_permlane32_swap_b32 v{ACC}, v{ACC+2}")
    a(f"v_permlane32_swap_b32 v{ACC+1}, v{ACC+3}")
    a(f"v_permlane32_swap_b32 v{ACC+4}, v{ACC+6}")
    a(f"v_permlane32_swap_b32 v{ACC+5}, v{ACC+7}")
    a("s_nop 1")
    a(f"buffer_store_dwordx4 {vr(ACC,4)}, v7, {sr(sOUT,4)}, s33 offen")
    a(f"buffer_store_dwordx4 {vr(ACC+4,4)}, v7, {sr(sOUT,4)}, s33 offen offset:32")
    stamp_flush(a, 2, sWS, sWAVE)
    a("s_endpgm")
    a.label("k3_loader")
    a(f"""
    s_sub_u32 s28, s{sWAVE}, 4
    v_bfe_u32 v5, v0, 2, 3
    v_lshrrev_b32 v6, 5, v0
    v_and_b32 v7, 3, v0
    v_lshlrev_b32 v8, 4, v7
    v_lshl_add_u32 v8, v6, 6, v8
    v_lshl_add_u32 v2, v5, 10, v8
    s_lshl_b32 s29, s28, 12
    s_lshl_b32 s30, s28, 15
    s_lshl_b32 s31, s{sCB}, 7
    s_add_u32 s30, s30, s31
    s_lshr_b32 s32, s28, 1
    s_and_b32 s33, s28, 1
    s_lshl_b32 s34, s32, 15
    s_lshl_b32 s35, s33, 12
    s_add_u32 s34, s34, s35
    s_lshl_b32 s35, s{sTB}, 16
    s_add_u32 s35, s35, s34
    s_add_u32 s35, s35, {OF:#x}
    """)
    for c in range(4):
        for i in range(4):
            a(f"s_add_u32 m0, s29, {K3_W + c*16384 + i*1024}")
            a(f"s_add_u32 s36, s30, {(c*128 + i*8)*1024}")
            a(f"buffer_load_dwordx4 v2, {sr(sWO,4)}, s36 offen lds")
            a(f"s_add_u32 m0, s34, {K3_O + c*8192 + i*1024}")
            a(f"s_add_u32 s36, s35, {c*8192 + i*1024}")
            a(f"buffer_load_dwordx4 v1, {sr(sWS,4)}, s36 offen lds")
    stamp(a, 2)
    for c in range(4):
        a(f"s_waitcnt vmcnt({8*(3-c)})")
        stamp(a, 3 + c)
        a("s_barrier")
    stamp_flush(a, 2, sWS, sWAVE)
    a.label("k3_end")
    a("s_endpgm")
    return kernel_desc(name, 48, 48)


HEADER = """; Kernarg layout for this problem (88 bytes, ptrs only, base s[0:1]):
"""


def build():
    a = A()
    descs = [gen_k1(a), gen_k2(a), gen_k3(a)]
    out = HEADER
    out += f"; @launch kernel=k1_proj_kernel grid=(256,1,1) block=(512,1,1) lds={K1_LDS}\n"
    out += f"; @launch kernel=k2_attn_kernel grid=(256,1,1) block=(768,1,1) lds={K2_LDS}\n"
    out += f"; @launch kernel=k3_out_kernel grid=(256,1,1) block=(512,1,1) lds={K3_LDS}\n"
    out += '.amdgcn_target "amdgcn-amd-amdhsa--gfx950"\n.text\n'
    out += "\n".join(a.L) + "\n"
    out += '.section .rodata,"a"\n'
    for d in descs:
        out += ".p2align 6\n" + d
    return out


if __name__ == "__main__":
    args = [x for x in sys.argv[1:] if not x.startswith("--")]
    path = args[0] if args else f"cdna_kernels/{NAME}.s"
    open(path, "w").write(build())
    print("wrote", path)
```
